```python
import torch

def _softmax(x, axis=-1):
    return torch.softmax(x, dim=axis)
def _gelu(x):
    return torch.nn.functional.gelu(x, approximate="tanh")
def _silu(x):
    return torch.nn.functional.silu(x)
def _sigmoid(x):
    return torch.sigmoid(x)
def _layernorm(x, axis=-1, eps=1e-5):
    m = x.mean(dim=axis, keepdim=True)
    v = x.var(dim=axis, keepdim=True, unbiased=False)
    return (x - m) / torch.sqrt(v + eps)
def _scatter_add(tgt, idx, src, axis=0):
    return tgt.clone().index_add_(axis, idx, src)
def _segment_sum(src, seg, n):
    out = torch.zeros((n,) + src.shape[1:], dtype=src.dtype)
    return out.index_add_(0, seg, src)
def _pad(x, pw):
    flat = tuple(v for pair in reversed(pw) for v in pair)
    return torch.nn.functional.pad(x, flat)

kernel_name = 'gated_mix__linear_kernel_hedgehog__compressed_kv_cla__prompt'

def setup_inputs():

    _w = (lambda a: (lambda t: t.to(torch.bfloat16) if t.is_floating_point() else t)(torch.as_tensor(a)))
    def _A_setup():
        B, S, D, H = 1, 2048, 512, 32
        Dh = D // H
        return {
            "x": _w((lambda *s: torch.randn(*s, dtype=torch.bfloat16) * 0.05)(B, S, D)),
            "wqkv": _w((lambda *s: torch.randn(*s, dtype=torch.bfloat16) * 1.6)(D, 3 * D)),
            "w_phi": _w((lambda *s: torch.randn(*s, dtype=torch.bfloat16) * 1.6)(H, Dh, Dh) * (Dh ** -0.5)),
            "wo": _w((lambda *s: torch.randn(*s, dtype=torch.bfloat16) * 0.05)(D, D)),
        }
    _A_in = _A_setup()

    def _B_setup():
        B, H, Sq, Sk, D, M = 1, 32, 2048, 2048, 128, 512
        Dc = 4 * D
        return {
            "x": _w((lambda *s: torch.randn(*s, dtype=torch.bfloat16) * 0.05)(B, Sq, M)),
            "c_kv": _w((lambda *s: torch.randn(*s, dtype=torch.bfloat16) * 0.8)(B, Sk, Dc)),
            "w_q": _w((lambda *s: torch.randn(*s, dtype=torch.bfloat16) * 6.4)(M, H, D) * (M ** -0.5)),
            "w_uk": _w((lambda *s: torch.randn(*s, dtype=torch.bfloat16) * 6.4)(Dc, H, D) * (Dc ** -0.5)),
            "w_uv": _w((lambda *s: torch.randn(*s, dtype=torch.bfloat16) * 0.8)(Dc, H, D) * (Dc ** -0.5)),
            "w_o": _w((lambda *s: torch.randn(*s, dtype=torch.bfloat16) * 0.8)(H, D, M) * ((H * D) ** -0.5)),
        }
    _B_in = _B_setup()

    return {
        "A_x": _A_in["x"],
        "A_wqkv": _A_in["wqkv"],
        "A_w_phi": _A_in["w_phi"],
        "A_wo": _A_in["wo"],
        "B_x": _B_in["x"],
        "B_c_kv": _B_in["c_kv"],
        "B_w_q": _B_in["w_q"],
        "B_w_uk": _B_in["w_uk"],
        "B_w_uv": _B_in["w_uv"],
        "B_w_o": _B_in["w_o"],
        "gate_w": _w((lambda *s: torch.randn(*s, dtype=torch.bfloat16) * 0.05)(512) * 16.0),
    }

def reference(A_x, A_wqkv, A_w_phi, A_wo, B_x, B_c_kv, B_w_q, B_w_uk, B_w_uv, B_w_o, gate_w):
    def _A_ref(x, wqkv, w_phi, wo):
        B, S, D = x.shape
        H = 32; Dh = D // H
        qkv = (lambda x, *d: x.permute(*d))((x @ wqkv).reshape(B, S, 3, H, Dh), 2, 0, 3, 1, 4)
        q, k, v = qkv[0], qkv[1], qkv[2]
        pq = torch.einsum("bhsd,hdf->bhsf", q, w_phi)
        pk = torch.einsum("bhsd,hdf->bhsf", k, w_phi)
        phi_q = torch.concatenate([_softmax(pq, axis=-1), _softmax(-pq, axis=-1)], axis=-1)
        phi_k = torch.concatenate([_softmax(pk, axis=-1), _softmax(-pk, axis=-1)], axis=-1)
        kv = torch.einsum("bhsf,bhsd->bhfd", phi_k, v)
        z  = torch.einsum("bhsf->bhf", phi_k)
        num = torch.einsum("bhqf,bhfd->bhqd", phi_q, kv)
        den = torch.einsum("bhqf,bhf->bhq", phi_q, z)[..., None] + 1e-6
        o = num / den
        return (lambda x, *d: x.permute(*d))(o, 0, 2, 1, 3).reshape(B, S, D) @ wo

    def _B_ref(x, c_kv, w_q, w_uk, w_uv, w_o):
        B, Sq, M = x.shape[0], x.shape[1], x.shape[2]
        Sk = c_kv.shape[1]
        H, D = w_q.shape[1], w_q.shape[2]
        q = torch.einsum("bqm,mhd->bhqd", x, w_q)
        k = torch.einsum("bkc,chd->bhkd", c_kv, w_uk)
        v = torch.einsum("bkc,chd->bhkd", c_kv, w_uv)
        scores = torch.einsum("bhqd,bhkd->bhqk", q, k) * (D ** -0.5)
        off = Sk - Sq
        qi = torch.arange(Sq)[:, None]
        kj = torch.arange(Sk)[None, :]
        cmask = kj <= (qi + off)
        scores = torch.where(cmask[None, None], scores, -1e9)
        p = _softmax(scores, axis=-1)
        ctx = torch.einsum("bhqk,bhkd->bhqd", p, v)
        return torch.einsum("bhqd,hdm->bqm", ctx, w_o)

    x = A_x
    g = _sigmoid((x * gate_w).sum(-1, keepdims=True))
    a = _A_ref(x, A_wqkv, A_w_phi, A_wo)
    b = _B_ref(x, B_c_kv, B_w_q, B_w_uk, B_w_uv, B_w_o)
    return g * a + (1 - g) * b
```

```python
class Asm:
    def __init__(self):
        self.lines = []
        self.uid = 0
    def __call__(self, s):
        for ln in s.split('\n'):
            self.lines.append('    ' + ln.strip())
    def label(self, name):
        self.lines.append(name + ':')
    def raw(self, s):
        self.lines.append(s)
    def newlabel(self, p='L'):
        self.uid += 1
        return f'{p}_{self.uid}'
    def text(self):
        return '\n'.join(self.lines) + '\n'

def vr(i, n=1):
    return f'v{i}' if n == 1 else f'v[{i}:{i+n-1}]'
def sr(i, n=1):
    return f's{i}' if n == 1 else f's[{i}:{i+n-1}]'

def mfma(a, d, A, B, C=None):
    if C is None: c = vr(d, 16)
    elif C == 'zero': c = '0'
    else: c = vr(C, 16)
    a(f'v_mfma_f32_32x32x16_bf16 {vr(d,16)}, {vr(A,4)}, {vr(B,4)}, {c}')

def make_srd(a, s, off, nbytes):
    a(f's_load_dwordx2 {sr(s,2)}, s[0:1], {off}')
def fin_srd(a, s, nbytes):
    a(f's_and_b32 {sr(s+1)}, {sr(s+1)}, 0xffff')
    a(f's_mov_b32 {sr(s+2)}, {nbytes}')
    a(f's_mov_b32 {sr(s+3)}, 0x00020000')

def kernel_header(a, name):
    a.raw('.text')
    a.raw(f'.globl {name}')
    a.raw('.p2align 8')
    a.raw(f'.type {name},@function')
    a.label(name)

def kernel_desc(a, name, nvgpr, nsgpr=102):
    acc = (nvgpr + 3) // 4 * 4
    a.raw('.section .rodata,"a"')
    a.raw('.p2align 6')
    a.raw(f'.amdhsa_kernel {name}')
    a.raw(f'  .amdhsa_next_free_vgpr {nvgpr}')
    a.raw(f'  .amdhsa_next_free_sgpr {nsgpr}')
    a.raw(f'  .amdhsa_accum_offset {acc}')
    a.raw('  .amdhsa_group_segment_fixed_size 0')
    a.raw('  .amdhsa_kernarg_size 112')
    a.raw('  .amdhsa_user_sgpr_count 2')
    a.raw('  .amdhsa_user_sgpr_kernarg_segment_ptr 1')
    a.raw('  .amdhsa_system_sgpr_workgroup_id_x 1')
    a.raw('.end_amdhsa_kernel')

WS_KV   = 0
WS_Q    = 32 << 20
WS_CTX  = 48 << 20
WS_WT   = 68 << 20
WS_PHIQ = 74 << 20
WS_KVP  = 78 << 20
WS_G    = 80 << 20
WS_BYTES = 256 << 20
```

```python
from asmlib import *

QSCALE = 0.127517432
import struct
def f2u(x): return struct.unpack('<I', struct.pack('<f', x))[0]

def gen_k1(a):
    name = 'k1_kernel'
    kernel_header(a, name)
    sX1, sX2, sW1, sWq, sWA, sWS = 8, 12, 16, 20, 24, 28
    sT = 32
    sWave, sH, sRt, sB = 36, 37, 38, 39
    sXb, sW1b, sWqb, sWAb = 40, 41, 42, 43
    sM = 44
    sM2 = 45
    sM1 = 46
    st0, st1, st2, st3 = 48, 49, 50, 51
    ACC = 0
    FR = 128
    vXa = 184
    vWa = 192
    vXE, vXO, vW, vA = 196, 197, 198, 199
    vLane, vL16 = 200, 201
    vG = 202
    vGF = 204
    vGA = 212
    vTid = 203
    vt = 214
    a('s_cmp_ge_u32 s2, 256')
    a('s_cbranch_scc1 k1_end')
    make_srd(a, sX1, 40, 0); make_srd(a, sX2, 0, 0); make_srd(a, sWq, 48, 0); make_srd(a, sWA, 8, 0)
    make_srd(a, sWS, 104, 0)
    a('s_load_dwordx2 s[52:53], s[0:1], 56')
    a('s_load_dwordx2 s[54:55], s[0:1], 64')
    a('s_load_dwordx2 s[56:57], s[0:1], 72')
    a('s_load_dwordx2 s[58:59], s[0:1], 24')
    a('s_load_dwordx2 s[60:61], s[0:1], 80')
    a('s_load_dwordx2 s[62:63], s[0:1], 16')
    a(f'v_lshrrev_b32 v1, 6, v0')
    a(f'v_mov_b32 {vr(vTid)}, v0')
    a(f'v_and_b32 {vr(vLane)}, 63, v0')
    a('s_nop 0')
    a(f'v_readfirstlane_b32 {sr(sWave)}, v1')
    a(f's_and_b32 {sr(st0)}, s2, 7')
    a(f's_lshr_b32 {sr(st1)}, s2, 3')
    a(f's_lshr_b32 {sr(st2)}, {sr(st1)}, 3')
    a(f's_lshl_b32 {sr(sH)}, {sr(st0)}, 2')
    a(f's_add_u32 {sr(sH)}, {sr(sH)}, {sr(st2)}')
    a(f's_and_b32 {sr(sRt)}, {sr(st1)}, 7')
    a(f's_lshl_b32 {sr(sM)}, {sr(sWave)}, 12')
    a(f's_lshl_b32 {sr(sM2)}, {sr(sWave)}, 11')
    a(f's_lshl_b32 {sr(sM1)}, {sr(sWave)}, 10')
    l = vr(vLane)
    a(f'v_lshrrev_b32 {vr(vt)}, 3, {l}')
    a(f'v_and_b32 {vr(vt+1)}, 7, {l}')
    a(f'v_lshrrev_b32 {vr(vt+2)}, 4, {l}')
    a(f'v_xor_b32 {vr(vt+3)}, {vr(vt+1)}, {vr(vt+2)}')
    a(f'v_lshlrev_b32 {vr(vt+3)}, 4, {vr(vt+3)}')
    a(f'v_lshl_add_u32 {vr(vXE)}, {vr(vt)}, 10, {vr(vt+3)}')
    a(f'v_xor_b32 {vr(vXO)}, 64, {vr(vXE)}')
    a(f'v_and_b32 {vr(vt+2)}, 1, {vr(vt+2)}')
    a(f'v_lshlrev_b32 {vr(vt+2)}, 2, {vr(vt+2)}')
    a(f'v_xor_b32 {vr(vt+1)}, {vr(vt+1)}, {vr(vt+2)}')
    a(f'v_lshlrev_b32 {vr(vt+3)}, 4, {vr(vt+1)}')
    a(f'v_lshl_add_u32 {vr(vW)}, {vr(vt)}, 13, {vr(vt+3)}')
    a(f'v_mul_u32_u24 {vr(vA)}, 3072, {vr(vt)}')
    a(f'v_lshrrev_b32 {vr(vt+2)}, 1, {vr(vt+1)}')
    a(f'v_lshl_add_u32 {vr(vA)}, {vr(vt+2)}, 10, {vr(vA)}')
    a(f'v_and_b32 {vr(vt+2)}, 1, {vr(vt+1)}')
    a(f'v_lshl_add_u32 {vr(vA)}, {vr(vt+2)}, 4, {vr(vA)}')
    a(f'v_mov_b32 {vr(vt+3)}, 0x40000000')
    a(f'v_cmp_lt_u32 vcc, 5, {vr(vt+1)}')
    a(f'v_lshlrev_b32 {vr(vL16)}, 4, {l}')
    a('s_nop 0')
    a(f'v_cndmask_b32 {vr(vA)}, {vr(vA)}, {vr(vt+3)}, vcc')
    a('s_waitcnt lgkmcnt(0)')
    fin_srd(a, sX1, 2048*1024); fin_srd(a, sX2, 2048*1024); fin_srd(a, sWq, 512*8192); fin_srd(a, sWA, 512*3072)
    fin_srd(a, sWS, WS_BYTES)
    a(f's_cmp_lt_u32 {sr(sWave)}, 4')
    a(f's_cselect_b32 {sr(sW1)}, s52, s54')
    a(f's_cselect_b32 {sr(sW1+1)}, s53, s55')
    fin_srd(a, sW1, 512*8192)
    a(f's_lshl_b32 {sr(sXb)}, {sr(sRt)}, 18')
    a(f's_lshl_b32 {sr(st0)}, {sr(sWave)}, 15')
    a(f's_add_u32 {sr(sXb)}, {sr(sXb)}, {sr(st0)}')
    a(f's_and_b32 {sr(st0)}, {sr(sWave)}, 1')
    a(f's_lshl_b32 {sr(sW1b)}, {sr(st0)}, 18')
    a(f's_lshl_b32 {sr(st1)}, {sr(sH)}, 8')
    a(f's_add_u32 {sr(sW1b)}, {sr(sW1b)}, {sr(st1)}')
    a(f's_bfe_u32 {sr(st0)}, {sr(sWave)}, 0x10001')
    a(f's_lshl_b32 {sr(st0)}, {sr(st0)}, 7')
    a(f's_add_u32 {sr(sW1b)}, {sr(sW1b)}, {sr(st0)}')
    a(f's_and_b32 {sr(st0)}, {sr(sWave)}, 3')
    a(f's_lshl_b32 {sr(sWqb)}, {sr(st0)}, 17')
    a(f's_add_u32 {sr(sWqb)}, {sr(sWqb)}, {sr(st1)}')
    a(f's_lshr_b32 {sr(st0)}, {sr(sWave)}, 2')
    a(f's_lshl_b32 {sr(st0)}, {sr(st0)}, 7')
    a(f's_add_u32 {sr(sWqb)}, {sr(sWqb)}, {sr(st0)}')
    a(f's_mul_i32 {sr(sWAb)}, {sr(sWave)}, {8*3072}')
    a(f's_lshl_b32 {sr(st0)}, {sr(sH)}, 5')
    a(f's_add_u32 {sr(sWAb)}, {sr(sWAb)}, {sr(st0)}')

    def dma_stage(s):
        buf = (s & 1) * 65536
        p2 = s >= 8
        st = s & 7
        X = sX2 if p2 else sX1
        a(f's_add_u32 m0, {sr(sM)}, {buf}')
        for j in range(4):
            a(f's_add_u32 {sr(st0)}, {sr(sXb)}, {st*128 + j*7168}')
            a(f'buffer_load_dwordx4 {vr(vXE if j%2==0 else vXO)}, {sr(X,4)}, {sr(st0)} offen offset:{j*1024} lds')
        if not p2:
            a(f's_add_u32 m0, {sr(sM)}, {buf+32768}')
            for j in range(4):
                a(f's_add_u32 {sr(st0)}, {sr(sW1b)}, {st*64*8192 + j*8*8192 - j*1024}')
                a(f'buffer_load_dwordx4 {vr(vW)}, {sr(sW1,4)}, {sr(st0)} offen offset:{j*1024} lds')
        else:
            a(f's_add_u32 m0, {sr(sM2)}, {buf+32768}')
            for j in range(2):
                a(f's_add_u32 {sr(st0)}, {sr(sWqb)}, {st*64*8192 + j*8*8192 - j*1024}')
                a(f'buffer_load_dwordx4 {vr(vW)}, {sr(sWq,4)}, {sr(st0)} offen offset:{j*1024} lds')
            a(f's_add_u32 m0, {sr(sM1)}, {buf+32768+16384}')
            a(f's_add_u32 {sr(st0)}, {sr(sWAb)}, {st*64*3072}')
            a(f'buffer_load_dwordx4 {vr(vA)}, {sr(sWA,4)}, {sr(st0)} offen lds')
    dma_stage(0)
    a(f's_mov_b32 {sr(sT)}, s60'); a(f's_mov_b32 {sr(sT+1)}, s61'); fin_srd(a, sT, 1024)
    a(f's_cmp_lg_u32 {sr(sWave)}, 0')
    a('s_cbranch_scc1 k1_nogate')
    a('s_mov_b32 m0, 131072')
    a('s_nop 0')
    a(f'buffer_load_dwordx4 {vr(vL16)}, {sr(sT,4)}, 0 offen lds')
    a.label('k1_nogate')
    dma_stage(1)

    hh = vt+30; nn = vt+31
    a(f'v_lshrrev_b32 {vr(hh)}, 5, {l}')
    a(f'v_and_b32 {vr(nn)}, 31, {l}')
    a(f'v_lshlrev_b32 {vr(vt+28)}, 12, {vr(hh)}')
    a(f'v_lshl_add_u32 {vr(vt+28)}, {vr(nn)}, 1, {vr(vt+28)}')
    a(f's_lshr_b32 {sr(64)}, s2, 4')
    a(f's_and_b32 {sr(65)}, s2, 15')
    a(f's_mul_i32 {sr(65)}, {sr(65)}, 18')
    a(f's_add_u32 {sr(65)}, {sr(65)}, {sr(sWave)}')
    for it in range(3):
        skip = f'k1_wt_skip{it}'
        if it == 2:
            a(f's_cmp_ge_u32 {sr(sWave)}, 2')
            a(f's_cbranch_scc1 {skip}')
        ks = 66
        a(f's_add_u32 {sr(ks)}, {sr(65)}, {8*it}')
        a(f's_cmp_lt_u32 {sr(ks)}, 256')
        a(f's_cselect_b32 {sr(sT)}, s56, s58')
        a(f's_cselect_b32 {sr(sT+1)}, s57, s59')
        a(f's_cselect_b32 {sr(67)}, 0, 256')
        fin_srd(a, sT, 4096*1024)
        a(f's_sub_u32 {sr(67)}, {sr(ks)}, {sr(67)}')
        a(f's_lshl_b32 {sr(67)}, {sr(67)}, 14')
        a(f's_lshl_b32 {sr(68)}, {sr(64)}, 6')
        a(f's_add_u32 {sr(67)}, {sr(67)}, {sr(68)}')
        base = vt + 8*it if it < 2 else vt + 16
        for j in range(8):
            a(f's_add_u32 {sr(68)}, {sr(67)}, {(8*(j>>2)+(j&3))*1024}')
            a(f'buffer_load_ushort {vr(base+j)}, {vr(vt+28)}, {sr(sT,4)}, {sr(68)} offen')
        a('s_waitcnt vmcnt(0)')
        for jj in range(4):
            a(f'v_lshl_or_b32 {vr(base+jj)}, {vr(base+2*jj+1)}, 16, {vr(base+2*jj)}')
        a(f's_mul_i32 {sr(68)}, {sr(64)}, 288')
        a(f's_add_u32 {sr(68)}, {sr(68)}, {sr(ks)}')
        a(f's_lshl_b32 {sr(68)}, {sr(68)}, 10')
        a(f's_add_u32 {sr(68)}, {sr(68)}, {WS_WT}')
        a(f'buffer_store_dwordx4 {vr(base,4)}, {vr(vL16)}, {sr(sWS,4)}, {sr(68)} offen')
        a.label(skip)

    a(f'v_lshrrev_b32 {vr(vt)}, 1, {vr(nn)}')
    a(f'v_and_b32 {vr(vt)}, 7, {vr(vt)}')
    a(f'v_xor_b32 {vr(vt)}, {vr(vt)}, {vr(hh)}')
    a(f'v_lshlrev_b32 {vr(vt)}, 4, {vr(vt)}')
    a(f'v_lshl_add_u32 {vr(vt)}, {vr(nn)}, 7, {vr(vt)}')
    a(f'v_bfe_u32 {vr(vt+1)}, {l}, 2, 2')
    a(f'v_lshl_add_u32 {vr(vt+2)}, {vr(hh)}, 3, {vr(vt+1)}')
    a(f'v_lshlrev_b32 {vr(vt+2)}, 7, {vr(vt+2)}')
    a(f'v_bfe_u32 {vr(vt+3)}, {l}, 4, 1')
    a(f'v_lshlrev_b32 {vr(vt+3)}, 5, {vr(vt+3)}')
    a(f'v_and_b32 {vr(vt+4)}, 3, {l}')
    a(f'v_lshl_add_u32 {vr(vt+3)}, {vr(vt+4)}, 3, {vr(vt+3)}')
    a(f'v_lshrrev_b32 {vr(vt+4)}, 1, {vr(vt+1)}')
    a(f'v_lshlrev_b32 {vr(vt+4)}, 6, {vr(vt+4)}')
    a(f'v_xor_b32 {vr(vt+3)}, {vr(vt+3)}, {vr(vt+4)}')
    a(f'v_add_u32 {vr(vt+2)}, {vr(vt+2)}, {vr(vt+3)}')
    vXl, vWl = vt+26, vt+27
    a(f'v_mov_b32 {vr(vXl)}, {vr(vt)}')
    a(f'v_mov_b32 {vr(vWl)}, {vr(vt+2)}')
    def set_addrs(sxbase, swbase):
        for b in range(2):
            for ks in range(4):
                a(f'v_xor_b32 {vr(vXa+4*b+ks)}, {32*ks}, {vr(vXl)}')
                a(f'v_add_u32 {vr(vXa+4*b+ks)}, {sr(sxbase)}, {vr(vXa+4*b+ks)}')
                if b: a(f'v_add_u32 {vr(vXa+4*b+ks)}, 0x10000, {vr(vXa+4*b+ks)}')
            for cb in range(2):
                a(f'v_xor_b32 {vr(vWa+2*b+cb)}, {64*cb}, {vr(vWl)}')
                a(f'v_add_u32 {vr(vWa+2*b+cb)}, {sr(swbase)}, {vr(vWa+2*b+cb)}')
                if b: a(f'v_add_u32 {vr(vWa+2*b+cb)}, 0x10000, {vr(vWa+2*b+cb)}')
    a(f's_bfe_u32 {sr(st0)}, {sr(sWave)}, 0x10001')
    a(f's_lshl_b32 {sr(st0)}, {sr(st0)}, 14')
    a(f's_lshr_b32 {sr(st1)}, {sr(sWave)}, 2')
    a(f's_lshl_b32 {sr(st1)}, {sr(st1)}, 1')
    a(f's_and_b32 {sr(st2)}, {sr(sWave)}, 1')
    a(f's_add_u32 {sr(st1)}, {sr(st1)}, {sr(st2)}')
    a(f's_lshl_b32 {sr(st1)}, {sr(st1)}, 13')
    a(f's_add_u32 {sr(st1)}, {sr(st1)}, 32768')
    set_addrs(st0, st1)
    a(f'v_lshlrev_b32 {vr(vG)}, 4, {vr(hh)}')
    a(f'v_add_u32 {vr(vG)}, 131072, {vr(vG)}')
    a(f'v_mov_b32 {vr(vGA)}, 0')

    def p1_reads(s, ks, fs):
        b = s & 1; f = FR + 28*fs; out = []
        for cb in range(2):
            for h2 in range(2):
                out.append(f'ds_read_b64_tr_b16 {vr(f+16+4*cb+2*h2,2)}, {vr(vWa+2*b+cb)} offset:{ks*2048+h2*512}')
        for rb in range(4):
            out.append(f'ds_read_b128 {vr(f+4*rb,4)}, {vr(vXa+4*b+ks)} offset:{rb*4096}')
        return out
    def p2_reads(s, ks, fs):
        b = s & 1; f = FR + 28*fs; out = []
        out.append(f'ds_read_b128 {vr(f,4)}, {vr(vXa+4*b+ks)}')
        for blk in range(6):
            grp, cb = blk >> 1, blk & 1
            for h2 in range(2):
                out.append(f'ds_read_b64_tr_b16 {vr(f+4+4*blk+2*h2,2)}, {vr(vWa+2*b+cb)} offset:{grp*8192+ks*2048+h2*512}')
        out.append(f'ds_read_b128 {vr(vGF+4*fs,4)}, {vr(vG)} offset:{(s&7)*128+ks*32}')
        return out
    def interleave(mf, rd, extra=()):
        n = len(mf); rd = list(rd); extra = list(extra)
        per = -(-len(rd)//n)
        for i, m in enumerate(mf):
            a(m)
            for r in rd[i*per:(i+1)*per]: a(r)
            if i < len(extra): a(extra[i])
    def M(d, A, B, c0):
        return f'v_mfma_f32_32x32x16_bf16 {vr(d,16)}, {vr(A,4)}, {vr(B,4)}, {"0" if c0 else vr(d,16)}'

    def phase(p, kwave):
        s0 = 0 if p == 1 else 8
        for s in range(s0, s0+8):
            for ks in range(4):
                fs = ks & 1; f = FR + 28*fs
                first = (s == s0 and ks == 0)
                last = (ks == 3)
                a('s_waitcnt lgkmcnt(0)')
                if last:
                    if s + 1 < 16:
                        a('s_waitcnt vmcnt(0)')
                        a('s_barrier')
                    if s + 2 < 16: dma_stage(s+2)
                    ns, nks = s+1, 0
                else:
                    ns, nks = s, ks+1
                if ns >= 16 or (p == 1 and ns == 8): rd = []
                else: rd = (p1_reads if p == 1 else p2_reads)(ns, nks, 1-fs)
                mf = []; extra = []
                if p == 1:
                    for rb in range(4):
                        for cb in range(2):
                            d = ACC + 16*(2*rb+cb); X = f+4*rb; W = f+16+4*cb
                            mf.append(M(d, W, X, first) if kwave else M(d, X, W, first))
                else:
                    X = f
                    for blk in range(5): mf.append(M(ACC+16*blk, f+4+4*blk, X, first))
                    mf.append(M(ACC+80, X, f+4+20, first))
                    for q in range(4):
                        extra.append(f'v_dot2c_f32_bf16 {vr(vGA)}, {vr(X+q)}, {vr(vGF+4*fs+q)}')
                interleave(mf, rd, extra)

    a('s_waitcnt vmcnt(0)')
    a('s_barrier')
    for r in p1_reads(0, 0, 0): a(r)
    a(f's_cmp_lt_u32 {sr(sWave)}, 4')
    a('s_cbranch_scc0 k1_vwave')
    phase(1, True)
    def kv_base():
        a(f's_lshl_b32 {sr(st0)}, {sr(sH)}, 20')
        a(f's_lshl_b32 {sr(st1)}, {sr(sRt)}, 17')
        a(f's_add_u32 {sr(st0)}, {sr(st0)}, {sr(st1)}')
        a(f's_bfe_u32 {sr(st1)}, {sr(sWave)}, 0x10001')
        a(f's_lshl_b32 {sr(st1)}, {sr(st1)}, 16')
        a(f's_add_u32 {sr(st0)}, {sr(st0)}, {sr(st1)}')
        a(f's_and_b32 {sr(st1)}, {sr(sWave)}, 1')
    def store_frags(d, soffs):
        for g in range(2):
            for q in range(4):
                a(f'v_cvt_pk_bf16_f32 {vr(d+8*g+q)}, {vr(d+8*g+2*q)}, {vr(d+8*g+2*q+1)}')
        for g in range(2):
            a(f's_add_u32 {sr(st2)}, {sr(st0)}, {soffs[g]}')
            a(f'buffer_store_dwordx4 {vr(d+8*g,4)}, {vr(vL16)}, {sr(sWS,4)}, {sr(st2)} offen')
    a('s_nop 7'); a('s_nop 3')
    kv_base()
    a(f's_lshl_b32 {sr(st1)}, {sr(st1)}, 12')
    a(f's_add_u32 {sr(st0)}, {sr(st0)}, {sr(st1)}')
    for rb in range(4):
        for cb in range(2):
            o = (rb >> 1)*32768 + (rb & 1)*8192 + 2*cb*1024
            store_frags(ACC+16*(2*rb+cb), [o, o+1024])
    a('s_branch k1_p2')
    a.label('k1_vwave')
    phase(1, False)
    a('s_nop 7'); a('s_nop 3')
    kv_base()
    a(f's_lshl_b32 {sr(st1)}, {sr(st1)}, 11')
    a(f's_add_u32 {sr(st0)}, {sr(st0)}, {sr(st1)}')
    for rb in range(4):
        for cb in range(2):
            o = (rb >> 1)*32768 + 16384 + 2*(rb & 1)*4096 + cb*1024
            store_frags(ACC+16*(2*rb+cb), [o, o+4096])
    a.label('k1_p2')
    a(f's_mov_b32 {sr(st1)}, 32768')
    set_addrs(sM, st1)
    for r in p2_reads(8, 0, 0): a(r)
    phase(2, None)
    a('s_nop 7'); a('s_nop 3')
    rowblk = 47
    a(f's_lshl_b32 {sr(rowblk)}, {sr(sRt)}, 3')
    a(f's_add_u32 {sr(rowblk)}, {sr(rowblk)}, {sr(sWave)}')
    hh = vt+30; nn = vt+31
    a(f's_mov_b32 {sr(sT)}, s62'); a(f's_mov_b32 {sr(sT+1)}, s63'); fin_srd(a, sT, 32*512)
    a(f'v_and_b32 {vr(vt)}, 15, {l}')
    a(f'v_lshlrev_b32 {vr(vt)}, 1, {vr(vt)}')
    a(f'v_lshl_add_u32 {vr(vt)}, {vr(hh)}, 7, {vr(vt)}')
    a(f's_lshl_b32 {sr(st3)}, {sr(sH)}, 9')
    WPr = FR
    for j in range(8):
        a(f'buffer_load_ushort {vr(WPr+j)}, {vr(vt)}, {sr(sT,4)}, {sr(st3)} offen offset:{(8*(j>>2)+(j&3))*32}')
    a(f's_lshl_b32 {sr(st0)}, {sr(sH)}, 19')
    a(f's_lshl_b32 {sr(st1)}, {sr(rowblk)}, 13')
    a(f's_add_u32 {sr(st0)}, {sr(st0)}, {sr(st1)}')
    a(f's_add_u32 {sr(st0)}, {sr(st0)}, {WS_Q}')
    a(f's_mov_b32 {sr(70)}, {hex(f2u(QSCALE))}')
    for db in range(4):
        for r in range(16):
            a(f'v_mul_f32 {vr(ACC+16*db+r)}, {sr(70)}, {vr(ACC+16*db+r)}')
        store_frags(ACC+16*db, [2*db*1024, (2*db+1)*1024])
    a(f'v_mov_b32 {vr(vt+1)}, {vr(vGA)}')
    a('s_nop 1')
    a(f'v_permlane32_swap_b32 {vr(vGA)}, {vr(vt+1)}')
    a('s_nop 1')
    a(f'v_add_f32 {vr(vGA)}, {vr(vGA)}, {vr(vt+1)}')
    a(f'v_mul_f32 {vr(vGA)}, 0xbfb8aa3b, {vr(vGA)}')
    a(f'v_exp_f32 {vr(vGA)}, {vr(vGA)}')
    a('s_nop 0')
    a(f'v_add_f32 {vr(vGA)}, 1.0, {vr(vGA)}')
    a(f'v_rcp_f32 {vr(vGA)}, {vr(vGA)}')
    a(f'v_lshlrev_b32 {vr(vt+1)}, 2, {vr(nn)}')
    a(f's_lshl_b32 {sr(st0)}, {sr(sH)}, 13')
    a(f's_lshl_b32 {sr(st1)}, {sr(rowblk)}, 7')
    a(f's_add_u32 {sr(st0)}, {sr(st0)}, {sr(st1)}')
    a(f's_add_u32 {sr(st0)}, {sr(st0)}, {WS_G}')
    a(f'buffer_store_dword {vr(vGA)}, {vr(vt+1)}, {sr(sWS,4)}, {sr(st0)} offen')
    QK = ACC+64; VA = ACC+80
    QF, KF = ACC+0, ACC+4
    for q in range(4):
        a(f'v_cvt_pk_bf16_f32 {vr(QF+q)}, {vr(QK+2*q)}, {vr(QK+2*q+1)}')
        a(f'v_cvt_pk_bf16_f32 {vr(KF+q)}, {vr(QK+8+2*q)}, {vr(QK+8+2*q+1)}')
    VF = ACC+8
    a(f'v_and_b32 {vr(vt+2)}, 27, {vr(nn)}')
    a(f'v_cmp_eq_u32 vcc, 16, {vr(vt+2)}')
    a(f'v_mov_b32 {vr(vt+3)}, 0x3f803f80')
    for q in range(8):
        a(f'v_cvt_pk_bf16_f32 {vr(VF+q)}, {vr(VA+2*q)}, {vr(VA+2*q+1)}')
    for q in range(8):
        a(f'v_cndmask_b32 {vr(VF+q)}, {vr(VF+q)}, {vr(vt+3)}, vcc')
    WP = ACC+16
    a('s_waitcnt vmcnt(0)')
    for q in range(4):
        a(f'v_lshl_or_b32 {vr(WP+q)}, {vr(WPr+2*q+1)}, 16, {vr(WPr+2*q)}')
    a(f'v_cmp_lt_u32 vcc, 15, {vr(nn)}')
    a(f'v_mov_b32 {vr(vt+3)}, 0x80008000')
    a(f'v_mov_b32 {vr(vt+4)}, 0')
    a(f'v_cndmask_b32 {vr(vt+3)}, {vr(vt+4)}, {vr(vt+3)}, vcc')
    for q in range(4):
        a(f'v_xor_b32 {vr(WP+q)}, {vr(WP+q)}, {vr(vt+3)}')
    PQ, PK = ACC+32, ACC+48
    a('s_nop 1')
    mfma(a, PQ, WP, QF, 'zero'); mfma(a, PK, WP, KF, 'zero')
    a('s_nop 7'); a('s_nop 7')
    L2E = 0x3fb8aa3b
    def softmax16(P, base):
        for g in range(2):
            b = P + 8*g; m = base + 2*g; m2 = m + 1
            a(f'v_max3_f32 {vr(m)}, {vr(b)}, {vr(b+1)}, {vr(b+2)}')
            a(f'v_max3_f32 {vr(m)}, {vr(m)}, {vr(b+3)}, {vr(b+4)}')
            a(f'v_max3_f32 {vr(m)}, {vr(m)}, {vr(b+5)}, {vr(b+6)}')
            a(f'v_max_f32 {vr(m)}, {vr(m)}, {vr(b+7)}')
            a(f'v_mov_b32 {vr(m2)}, {vr(m)}')
            a('s_nop 1')
            a(f'v_permlane32_swap_b32 {vr(m)}, {vr(m2)}')
            a('s_nop 1')
            a(f'v_max_f32 {vr(m)}, {vr(m)}, {vr(m2)}')
            a(f'v_mul_f32 {vr(m)}, 0xbfb8aa3b, {vr(m)}')
            a(f's_mov_b32 {sr(71)}, {hex(L2E)}')
            for r in range(8):
                a(f'v_fma_f32 {vr(b+r)}, {vr(b+r)}, {sr(71)}, {vr(m)}')
            for r in range(8):
                a(f'v_exp_f32 {vr(b+r)}, {vr(b+r)}')
            a('s_nop 0')
            a(f'v_add_f32 {vr(m)}, {vr(b)}, {vr(b+1)}')
            for r in range(2, 8):
                a(f'v_add_f32 {vr(m)}, {vr(m)}, {vr(b+r)}')
            a(f'v_mov_b32 {vr(m2)}, {vr(m)}')
            a('s_nop 1')
            a(f'v_permlane32_swap_b32 {vr(m)}, {vr(m2)}')
            a('s_nop 1')
            a(f'v_add_f32 {vr(m)}, {vr(m)}, {vr(m2)}')
            a(f'v_rcp_f32 {vr(m)}, {vr(m)}')
            a('s_nop 0')
            for r in range(8):
                a(f'v_mul_f32 {vr(b+r)}, {vr(m)}, {vr(b+r)}')
    softmax16(PQ, vt+4); softmax16(PK, vt+8)
    a(f's_lshl_b32 {sr(st0)}, {sr(sH)}, 17')
    a(f's_lshl_b32 {sr(st1)}, {sr(rowblk)}, 11')
    a(f's_add_u32 {sr(st0)}, {sr(st0)}, {sr(st1)}')
    a(f's_add_u32 {sr(st0)}, {sr(st0)}, {WS_PHIQ}')
    store_frags(PQ, [0, 1024])
    for g in range(2):
        for q in range(4):
            a(f'v_cvt_pk_bf16_f32 {vr(PK+8*g+q)}, {vr(PK+8*g+2*q)}, {vr(PK+8*g+2*q+1)}')
    ID = ACC+20
    a(f'v_lshlrev_b32 {vr(vt+12)}, 2, {vr(hh)}')
    a(f'v_sub_u32 {vr(vt+12)}, {vr(nn)}, {vr(vt+12)}')
    for g in range(2):
        for q in range(4):
            k_lo = 16*g + 8*(q >> 1) + 2*(q & 1)
            a(f'v_cmp_eq_u32 vcc, {k_lo}, {vr(vt+12)}')
            a(f'v_mov_b32 {vr(vt+13)}, 0x3f80')
            a(f'v_mov_b32 {vr(vt+14)}, 0')
            a(f'v_cndmask_b32 {vr(ID+4*g+q)}, {vr(vt+14)}, {vr(vt+13)}, vcc')
            a(f'v_cmp_eq_u32 vcc, {k_lo+1}, {vr(vt+12)}')
            a(f'v_mov_b32 {vr(vt+13)}, 0x3f800000')
            a('s_nop 0')
            a(f'v_cndmask_b32 {vr(vt+13)}, {vr(vt+14)}, {vr(vt+13)}, vcc')
            a(f'v_or_b32 {vr(ID+4*g+q)}, {vr(ID+4*g+q)}, {vr(vt+13)}')
    TT = ACC+64
    a('s_nop 1')
    mfma(a, TT, PK, ID, 'zero'); mfma(a, TT, PK+8, ID+4)
    a('s_nop 7'); a('s_nop 7')
    for g in range(2):
        for q in range(4):
            a(f'v_cvt_pk_bf16_f32 {vr(TT+8*g+q)}, {vr(TT+8*g+2*q)}, {vr(TT+8*g+2*q+1)}')
    KZ = ACC+96
    a('s_nop 1')
    mfma(a, KZ, TT, VF, 'zero'); mfma(a, KZ, TT+8, VF+4)
    a('s_nop 7'); a('s_nop 7')
    a(f'v_add_u32 {vr(vt+12)}, {sr(sM)}, {vr(vL16)}')
    for q in range(4):
        a(f'ds_write_b128 {vr(vt+12)}, {vr(KZ+4*q,4)} offset:{q*1024}')
    a('s_waitcnt lgkmcnt(0)')
    a('s_barrier')
    a(f'v_bfe_u32 {vr(vt+12)}, {vr(vTid)}, 1, 2')
    a(f'v_lshlrev_b32 {vr(vt+12)}, 10, {vr(vt+12)}')
    a(f'v_lshrrev_b32 {vr(vt+13)}, 3, {vr(vTid)}')
    a(f'v_lshl_add_u32 {vr(vt+12)}, {vr(vt+13)}, 4, {vr(vt+12)}')
    a(f'v_and_b32 {vr(vt+13)}, 1, {vr(vTid)}')
    a(f'v_lshl_add_u32 {vr(vt+12)}, {vr(vt+13)}, 3, {vr(vt+12)}')
    for wv in range(8):
        a(f'ds_read_b64 {vr(ACC+2*wv,2)}, {vr(vt+12)} offset:{wv*4096}')
    a('s_waitcnt lgkmcnt(0)')
    for wv in range(1, 8):
        a(f'v_add_f32 {vr(ACC)}, {vr(ACC)}, {vr(ACC+2*wv)}')
        a(f'v_add_f32 {vr(ACC+1)}, {vr(ACC+1)}, {vr(ACC+2*wv+1)}')
    a(f's_lshl_b32 {sr(st0)}, {sr(sH)}, 15')
    a(f's_lshl_b32 {sr(st1)}, {sr(sRt)}, 12')
    a(f's_add_u32 {sr(st0)}, {sr(st0)}, {sr(st1)}')
    a(f's_add_u32 {sr(st0)}, {sr(st0)}, {WS_KVP}')
    a(f'v_lshlrev_b32 {vr(vt+12)}, 3, {vr(vTid)}')
    a(f'buffer_store_dwordx2 {vr(ACC,2)}, {vr(vt+12)}, {sr(sWS,4)}, {sr(st0)} offen')
    a('s_waitcnt vmcnt(0)')
    a.label('k1_end')
    a('s_endpgm')
    kernel_desc(a, name, 248)
    return name
```

```python
from asmlib import *

def gen_k2(a):
    name = 'k2_kernel'
    kernel_header(a, name)
    sWS = 8
    sWave, sH, sJ, sTile, sT, sTA, sIsB, sWl = 12, 13, 14, 15, 16, 17, 18, 19
    sKg, sMK, sCnt, sFb, sRb = 20, 21, 22, 23, 24
    sKg0 = 25
    st0, st1, st2 = 26, 27, 28
    sMsk = 32
    O = 0; S = [64, 96]; Q = 128; NEGM = 160; F = [176, 192]
    vKa, vVa = 208, 209
    vL = 210
    vDa, vDb, vL16, vG = 212, 213, 214, 215
    vTid, vLane = 216, 217
    vt = 218
    LDS_FLAG = 131072; LDS_KZ = 131072 + 256
    a('s_cmp_ge_u32 s2, 256')
    a('s_cbranch_scc1 k2_end')
    make_srd(a, sWS, 104, 0)
    a(f'v_mov_b32 {vr(vTid)}, v0')
    a(f'v_lshrrev_b32 v1, 6, v0')
    a(f'v_and_b32 {vr(vLane)}, 63, v0')
    a(f'v_lshlrev_b32 {vr(vL16)}, 4, {vr(vLane)}')
    a(f'v_readfirstlane_b32 {sr(sWave)}, v1')
    a(f's_and_b32 {sr(st0)}, s2, 7')
    a(f's_lshr_b32 {sr(st1)}, s2, 3')
    a(f's_and_b32 {sr(sJ)}, {sr(st1)}, 7')
    a(f's_lshr_b32 {sr(st1)}, {sr(st1)}, 3')
    a(f's_lshl_b32 {sr(sH)}, {sr(st0)}, 2')
    a(f's_add_u32 {sr(sH)}, {sr(sH)}, {sr(st1)}')
    a(f's_lshr_b32 {sr(sIsB)}, {sr(sWave)}, 2')
    a(f's_and_b32 {sr(sWl)}, {sr(sWave)}, 3')
    a(f's_sub_u32 {sr(st0)}, 15, {sr(sJ)}')
    a(f's_cmp_eq_u32 {sr(sIsB)}, 0')
    a(f's_cselect_b32 {sr(sTile)}, {sr(st0)}, {sr(sJ)}')
    a(f's_lshl_b32 {sr(sT)}, {sr(sTile)}, 1')
    a(f's_add_u32 {sr(sT)}, {sr(sT)}, 2')
    a(f's_lshl_b32 {sr(sTA)}, {sr(st0)}, 1')
    a(f's_add_u32 {sr(sTA)}, {sr(sTA)}, 2')
    a(f's_lshl_b32 {sr(sRb)}, {sr(sTile)}, 2')
    a(f's_add_u32 {sr(sRb)}, {sr(sRb)}, {sr(sWl)}')
    a(f's_lshl_b32 {sr(sKg0)}, {sr(sH)}, 20')
    a(f's_lshl_b32 {sr(st0)}, {sr(sWl)}, 12')
    a(f's_add_u32 {sr(sKg0)}, {sr(sKg0)}, {sr(st0)}')
    a(f's_mov_b32 {sr(sFb)}, 0')
    a('s_waitcnt lgkmcnt(0)')
    fin_srd(a, sWS, WS_BYTES)
    a(f'v_lshlrev_b32 {vr(vt)}, 3, {vr(vTid)}')
    a(f's_lshl_b32 {sr(st0)}, {sr(sH)}, 15')
    a(f's_add_u32 {sr(st0)}, {sr(st0)}, {WS_KVP}')
    for rt in range(8):
        a(f's_add_u32 {sr(st1)}, {sr(st0)}, {rt*4096}')
        a(f'buffer_load_dwordx2 {vr(2*rt,2)}, {vr(vt)}, {sr(sWS,4)}, {sr(st1)} offen')
    a(f's_lshl_b32 {sr(st0)}, {sr(sH)}, 17')
    a(f's_lshl_b32 {sr(st1)}, {sr(sRb)}, 11')
    a(f's_add_u32 {sr(st0)}, {sr(st0)}, {sr(st1)}')
    a(f's_add_u32 {sr(st0)}, {sr(st0)}, {WS_PHIQ}')
    PH = 32
    for g in range(2):
        a(f'buffer_load_dwordx4 {vr(PH+4*g,4)}, {vr(vL16)}, {sr(sWS,4)}, {sr(st0)} offen offset:{g*1024}')
    a(f'v_and_b32 {vr(vt+1)}, 31, {vr(vLane)}')
    a(f'v_lshlrev_b32 {vr(vt+2)}, 2, {vr(vt+1)}')
    a(f's_lshl_b32 {sr(st0)}, {sr(sH)}, 13')
    a(f's_lshl_b32 {sr(st1)}, {sr(sRb)}, 7')
    a(f's_add_u32 {sr(st0)}, {sr(st0)}, {sr(st1)}')
    a(f's_add_u32 {sr(st0)}, {sr(st0)}, {WS_G}')
    a(f'buffer_load_dword {vr(vG)}, {vr(vt+2)}, {sr(sWS,4)}, {sr(st0)} offen')
    a(f's_lshl_b32 {sr(st0)}, {sr(sH)}, 19')
    a(f's_lshl_b32 {sr(st1)}, {sr(sRb)}, 13')
    a(f's_add_u32 {sr(st0)}, {sr(st0)}, {sr(st1)}')
    a(f's_add_u32 {sr(st0)}, {sr(st0)}, {WS_Q}')
    for t in range(8):
        if t == 4: a(f's_add_u32 {sr(st0)}, {sr(st0)}, 4096')
        a(f'buffer_load_dwordx4 {vr(Q+4*t,4)}, {vr(vL16)}, {sr(sWS,4)}, {sr(st0)} offen offset:{(t&3)*1024}')
    a(f'v_lshrrev_b32 {vr(vt+3)}, 5, {vr(vLane)}')
    a(f'v_lshlrev_b32 {vr(vt+3)}, 2, {vr(vt+3)}')
    a(f'v_sub_u32 {vr(vDa)}, {vr(vt+1)}, {vr(vt+3)}')
    a(f's_lshl_b32 {sr(st0)}, {sr(sWl)}, 5')
    a(f'v_add_u32 {vr(vDa)}, {sr(st0)}, {vr(vDa)}')
    a(f'v_subrev_u32 {vr(vDb)}, 64, {vr(vDa)}')
    for r in range(16): a(f'v_mov_b32 {vr(NEGM+r)}, 0')

    def dma4(soff_reg, soff_add, m0_reg, m0_add):
        a(f's_add_u32 m0, {sr(m0_reg)}, {m0_add}')
        a(f's_add_u32 {sr(st2)}, {sr(soff_reg)}, {soff_add}')
        for i in range(4):
            a(f'buffer_load_dwordx4 {vr(vL16)}, {sr(sWS,4)}, {sr(st2)} offen offset:{i*1024} lds')
    def prologue_dma():
        a(f's_lshl_b32 {sr(sMK)}, {sr(sWl)}, 12')
        dma4(sKg0, 0, sMK, 0)
        dma4(sKg0, 32768, sMK, 32768)
        dma4(sKg0, 16384, sMK, 16384)
        dma4(sKg0, 32768+16384, sMK, 32768+16384)
        dma4(sKg0, 65536, sMK, 65536)
        dma4(sKg0, 65536+16384, sMK, 65536+16384)
        dma4(sKg0, 98304, sMK, 98304)
        a(f's_add_u32 {sr(sKg)}, {sr(sKg0)}, {4*32768}')
    a(f's_cmp_eq_u32 {sr(sIsB)}, 0')
    a('s_cbranch_scc1 k2_pa')
    prologue_dma()
    a('s_waitcnt vmcnt(28)')
    a('s_branch k2_pb')
    a.label('k2_pa')
    a('s_waitcnt vmcnt(0)')
    a.label('k2_pb')
    for rt in range(1, 8):
        a(f'v_add_f32 v0, v0, {vr(2*rt)}')
        a(f'v_add_f32 v1, v1, {vr(2*rt+1)}')
    a('v_cvt_pk_bf16_f32 v0, v0, v1')
    a(f'v_bfe_u32 {vr(vt+4)}, {vr(vTid)}, 2, 1')
    a(f'v_lshlrev_b32 {vr(vt+4)}, 10, {vr(vt+4)}')
    a(f'v_lshrrev_b32 {vr(vt+5)}, 3, {vr(vTid)}')
    a(f'v_lshl_add_u32 {vr(vt+4)}, {vr(vt+5)}, 4, {vr(vt+4)}')
    a(f'v_and_b32 {vr(vt+5)}, 3, {vr(vTid)}')
    a(f'v_lshl_add_u32 {vr(vt+4)}, {vr(vt+5)}, 2, {vr(vt+4)}')
    a(f'v_add_u32 {vr(vt+4)}, {LDS_KZ}, {vr(vt+4)}')
    a(f'ds_write_b32 {vr(vt+4)}, v0')
    a(f'v_mov_b32 {vr(vt+5)}, {LDS_FLAG}')
    a(f'v_mov_b32 {vr(vt+6)}, 0')
    a(f'ds_write_b32 {vr(vt+5)}, {vr(vt+6)}')
    a('s_waitcnt vmcnt(16) lgkmcnt(0)')
    a('s_barrier')
    a(f'v_add_u32 {vr(vt+4)}, {LDS_KZ}, {vr(vL16)}')
    a(f'ds_read_b128 {vr(16,4)}, {vr(vt+4)}')
    a(f'ds_read_b128 {vr(20,4)}, {vr(vt+4)} offset:1024')
    a('s_waitcnt lgkmcnt(0)')
    mfma(a, 40, 16, PH, 'zero'); mfma(a, 40, 20, PH+4)
    a('s_nop 7'); a('s_nop 7')
    a(f'v_add_f32 {vr(48)}, 0x358637bd, {vr(48)}')
    a(f'v_rcp_f32 {vr(48)}, {vr(48)}')
    a('s_nop 0')
    a(f'v_mul_f32 {vr(48)}, {vr(vG)}, {vr(48)}')
    for r in range(8): a(f'v_mul_f32 {vr(40+r)}, {vr(48)}, {vr(40+r)}')
    for q in range(4): a(f'v_cvt_pk_bf16_f32 {vr(40+q)}, {vr(40+2*q)}, {vr(40+2*q+1)}')
    a(f's_mul_i32 {sr(st0)}, {sr(sRb)}, {288*1024}')
    a(f's_lshl_b32 {sr(st1)}, {sr(sH)}, 10')
    a(f's_add_u32 {sr(st0)}, {sr(st0)}, {sr(st1)}')
    a(f's_add_u32 {sr(st0)}, {sr(st0)}, {WS_CTX + 256*1024}')
    a(f'buffer_store_dwordx4 {vr(40,4)}, {vr(vL16)}, {sr(sWS,4)}, {sr(st0)} offen')
    a('s_branch k2_start')

    a.label('k2_restart')
    a(f's_cmp_eq_u32 {sr(sIsB)}, 0')
    a('s_cbranch_scc1 k2_ra')
    prologue_dma()
    a.label('k2_ra')
    a('s_waitcnt vmcnt(16)')
    a('s_barrier')
    a.label('k2_start')

    def M(d, A, B, C):
        a(f'v_mfma_f32_32x32x16_bf16 {vr(d,16)}, {vr(A,4)}, {vr(B,4)}, {vr(C,16)}')
    def kread(f, addr, kb, t): return f'ds_read_b128 {vr(f,4)}, {vr(addr)} offset:{kb*8192+t*1024}'
    def vread(f, addr, s, db): return f'ds_read_b128 {vr(f,4)}, {vr(addr)} offset:{16384+s*4096+db*1024}'

    def chunk_ops(Sb, kb, qt, vDm):
        b = Sb + 16*kb + 4*qt; b8 = Sb + 16*kb + 8*(qt >> 1); d = b8 + 2*(qt & 1)
        g = [[], [], [], []]
        g[0] += [f'v_exp_f32 {vr(b)}, {vr(b)}', f'v_exp_f32 {vr(b+1)}, {vr(b+1)}']
        g[1] += [f'v_exp_f32 {vr(b+2)}, {vr(b+2)}', f'v_exp_f32 {vr(b+3)}, {vr(b+3)}']
        if vDm is not None:
            for e in range(4):
                g[e >> 1].append(f'v_cmp_le_i32 {sr(sMsk+2*e,2)}, {32*kb+8*qt+e}, {vr(vDm)}')
            for e in range(4):
                g[2].append(f'v_cndmask_b32 {vr(b+e)}, 0, {vr(b+e)}, {sr(sMsk+2*e,2)}')
        g[2] += [f'v_pk_add_f32 {vr(vL,2)}, {vr(vL,2)}, {vr(b,2)}', f'v_pk_add_f32 {vr(vL,2)}, {vr(vL,2)}, {vr(b+2,2)}']
        g[3] += [f'v_cvt_pk_bf16_f32 {vr(d)}, {vr(b)}, {vr(b+1)}', f'v_cvt_pk_bf16_f32 {vr(d+1)}, {vr(b+2)}, {vr(b+3)}']
        return g

    for r in range(64): a(f'v_mov_b32 {vr(O+r)}, 0')
    a(f'v_mov_b32 {vr(vL)}, 0'); a(f'v_mov_b32 {vr(vL+1)}, 0')
    a(f'v_mov_b32 {vr(vKa)}, {vr(vL16)}')
    for i in range(4): a(kread(F[0]+4*i, vKa, 0, i))
    for i in range(4): a(kread(F[1]+4*i, vKa, 0, 4+i))
    for g in range(4):
        kb, t0 = g >> 1, 4*(g & 1)
        a('s_waitcnt lgkmcnt(4)' if g < 3 else 's_waitcnt lgkmcnt(0)')
        for i in range(4):
            d = S[0] + 16*kb
            M(d, F[g & 1]+4*i, Q+4*(t0+i), NEGM if (t0+i) == 0 else d)
            if g < 2: a(kread(F[g & 1]+4*i, vKa, 1, t0+i))
    a(f'v_mov_b32 {vr(vVa)}, {vr(vKa)}')
    a(f'v_add_u32 {vr(vKa)}, 32768, {vr(vKa)}')
    for i in range(4): a(kread(F[0]+4*i, vKa, 0, i))
    for i in range(4): a(vread(F[1]+4*i, vVa, 0, i))
    a(f's_sub_u32 {sr(st0)}, {sr(sT)}, 2')
    a(f's_lshl_b32 {sr(st0)}, {sr(st0)}, 6')
    a(f'v_add_u32 {vr(vt)}, {sr(st0)}, {vr(vDa)}')
    a('s_nop 4')
    for qt in range(4):
        for gl in chunk_ops(S[0], 0, qt, vt):
            for op in gl: a(op)
            a('s_nop 1')
    a('s_waitcnt vmcnt(0)')
    a(f's_sub_u32 {sr(sCnt)}, {sr(sT)}, 4')
    a(f's_lshr_b32 {sr(sCnt)}, {sr(sCnt)}, 1')
    a(f's_cmp_eq_u32 {sr(sT)}, 2')
    a('s_cbranch_scc1 k2_V2')

    def sync_point(tag):
        a('s_waitcnt vmcnt(8)')
        a('s_barrier')
        a(f's_cmp_eq_u32 {sr(sIsB)}, 0')
        a(f's_cbranch_scc1 k2_nd_{tag}')
        a(f's_add_u32 {sr(st1)}, {sr(sMK)}, 98304')
        a(f's_and_b32 {sr(st1)}, {sr(st1)}, 0x1ffff')
        dma4(sKg, -16384 & 0xffffffff, st1, 16384)
        dma4(sKg, 0, sMK, 0)
        a(f's_add_u32 {sr(sKg)}, {sr(sKg)}, 32768')
        a(f's_add_u32 {sr(sMK)}, {sr(sMK)}, 32768')
        a(f's_and_b32 {sr(sMK)}, {sr(sMK)}, 0x1ffff')
        a.label(f'k2_nd_{tag}')

    def iteration(par, tag, mask_cur, mask_next, do_qk, next_k, next_v, entry):
        cur, nxt = S[par], S[1-par]
        out = list(entry)
        def wait(setname):
            idx = max([i for i, x in enumerate(out) if x == setname], default=-1)
            if idx < 0: return
            n = len(out) - 1 - idx
            a(f's_waitcnt lgkmcnt({n})')
            del out[:idx+1]
        for g in range(8):
            isqk = (g % 2 == 0)
            fs = g & 1; f = F[fs]
            if g == 6:
                sync_point(tag)
                if next_k or next_v:
                    a(f'v_mov_b32 {vr(vt+1)}, {vr(vKa)}')
                    a(f'v_add_u32 {vr(vKa)}, 32768, {vr(vKa)}')
                    a(f'v_and_b32 {vr(vKa)}, 0x1ffff, {vr(vKa)}')
            if g == 7 and (next_k or next_v):
                a(f'v_mov_b32 {vr(vVa)}, {vr(vt+1)}')
            if g < 4: ch = chunk_ops(cur, 1, g, vDm(mask_cur))
            elif do_qk: ch = chunk_ops(nxt, 0, g-4, vDm(mask_next))
            else: ch = None
            active = do_qk or not isqk
            if active: wait(f'F{fs}')
            for i in range(4):
                rd = None
                if isqk:
                    if do_qk:
                        kb, t0 = g >> 2, 4*((g >> 1) & 1)
                        d = nxt + 16*kb
                        M(d, f+4*i, Q+4*(t0+i), NEGM if (t0+i) == 0 else d)
                        if g < 6:
                            g2 = g+2; rd = kread(f+4*i, vKa, g2 >> 2, 4*((g2 >> 1) & 1)+i)
                        elif next_k: rd = kread(f+4*i, vKa, 0, i)
                else:
                    s = g >> 1
                    M(O+16*i, f+4*i, cur+16*(s >> 1)+8*(s & 1), O+16*i)
                    if g < 7: rd = vread(f+4*i, vVa, s+1, i)
                    elif next_v: rd = vread(f+4*i, vVa, 0, i)
                if rd: a(rd); out.append(f'F{fs}')
                if ch:
                    for op in ch[i]: a(op)
                    if not active and i < 3: a('s_nop 0')
        return out
    def vDm(m): return {None: None, 'a': vDa, 'b': vDb}[m]
    full = ['F0']*4 + ['F1']*4
    a.label('k2_loop')
    o = iteration(0, 'e', None, None, True, True, True, full); assert o == full, o
    a(f's_cmp_eq_u32 {sr(sCnt)}, 0')
    a('s_cbranch_scc1 k2_V1')
    o = iteration(1, 'o', None, None, True, True, True, full); assert o == full
    a(f's_sub_u32 {sr(sCnt)}, {sr(sCnt)}, 1')
    a('s_branch k2_loop')
    a.label('k2_V1')
    o = iteration(1, 'v1', None, 'a', True, True, True, full); assert o == full
    a.label('k2_V2')
    o = iteration(0, 'v2', 'a', 'b', True, False, True, full); assert o == ['F1']*4, o
    o = iteration(1, 'v3', 'b', None, False, False, False, o); assert o == [], o
    a(f's_cmp_eq_u32 {sr(sIsB)}, 0')
    a('s_cbranch_scc1 k2_fin')
    a(f's_sub_u32 {sr(sCnt)}, {sr(sTA)}, {sr(sT)}')
    a.label('k2_ld')
    sync_point('ld')
    a(f's_sub_u32 {sr(sCnt)}, {sr(sCnt)}, 1')
    a(f's_cmp_lg_u32 {sr(sCnt)}, 0')
    a('s_cbranch_scc1 k2_ld')
    a.label('k2_fin')
    a('s_waitcnt vmcnt(0)')
    a(f'v_add_f32 {vr(vL)}, {vr(vL)}, {vr(vL+1)}')
    a(f'v_mov_b32 {vr(vL+1)}, {vr(vL)}')
    a('s_nop 1')
    a(f'v_permlane32_swap_b32 {vr(vL)}, {vr(vL+1)}')
    a('s_nop 1')
    a(f'v_add_f32 {vr(vL)}, {vr(vL)}, {vr(vL+1)}')
    a(f's_cmp_lg_u32 {sr(sFb)}, 0')
    a('s_cbranch_scc1 k2_epi')
    a(f'v_mov_b32 {vr(vt)}, 0x21800000')
    a(f'v_mov_b32 {vr(vt+1)}, 0x5d800000')
    a(f'v_cmp_ge_f32 {sr(sMsk,2)}, {vr(vL)}, {vr(vt)}')
    a(f'v_cmp_le_f32 {sr(sMsk+2,2)}, {vr(vL)}, {vr(vt+1)}')
    a('s_nop 1')
    a(f's_and_b64 {sr(sMsk,2)}, {sr(sMsk,2)}, {sr(sMsk+2,2)}')
    a(f's_not_b64 {sr(sMsk,2)}, {sr(sMsk,2)}')
    a(f's_cmp_eq_u64 {sr(sMsk,2)}, 0')
    a('s_cbranch_scc1 k2_ok')
    a(f'v_mov_b32 {vr(vt)}, {LDS_FLAG}')
    a(f'v_mov_b32 {vr(vt+1)}, 1')
    a(f'ds_write_b32 {vr(vt)}, {vr(vt+1)}')
    a.label('k2_ok')
    a('s_waitcnt lgkmcnt(0)')
    a('s_barrier')
    a(f'v_mov_b32 {vr(vt)}, {LDS_FLAG}')
    a(f'ds_read_b32 {vr(vt+1)}, {vr(vt)}')
    a('s_waitcnt lgkmcnt(0)')
    a(f'v_readfirstlane_b32 {sr(st0)}, {vr(vt+1)}')
    a(f's_cmp_eq_u32 {sr(st0)}, 0')
    a('s_cbranch_scc1 k2_epi')
    a(f's_mov_b32 {sr(sFb)}, 1')
    vM = vt+2; vDg = vt+3; vNI = vt+4
    a(f'v_mov_b32 {vr(vM)}, 0xff7fffff')
    a(f'v_mov_b32 {vr(vNI)}, 0xff7fffff')
    a(f's_sub_u32 {sr(st0)}, {sr(sT)}, 2')
    a(f's_lshl_b32 {sr(st0)}, {sr(st0)}, 6')
    a(f'v_add_u32 {vr(vDg)}, {sr(st0)}, {vr(vDa)}')
    a(f's_lshl_b32 {sr(st1)}, {sr(sH)}, 20')
    a(f's_mov_b32 {sr(sCnt)}, {sr(sT)}')
    a.label('k2_mx')
    for kb in range(2):
        for t in range(8):
            a(f's_add_u32 {sr(st2)}, {sr(st1)}, {kb*8192 + t*1024}')
            a(f'buffer_load_dwordx4 {vr(O+4*t,4)}, {vr(vL16)}, {sr(sWS,4)}, {sr(st2)} offen')
        a('s_waitcnt vmcnt(0)')
        for t in range(8):
            a(f'v_mfma_f32_32x32x16_bf16 {vr(S[0],16)}, {vr(O+4*t,4)}, {vr(Q+4*t,4)}, {"0" if t==0 else vr(S[0],16)}')
        a('s_nop 7'); a('s_nop 7')
        for r in range(16):
            a(f'v_cmp_le_i32 vcc, {32*kb + 8*(r >> 2) + (r & 3)}, {vr(vDg)}')
            a('s_nop 1')
            a(f'v_cndmask_b32 {vr(S[0]+r)}, {vr(vNI)}, {vr(S[0]+r)}, vcc')
            a(f'v_max_f32 {vr(vM)}, {vr(vM)}, {vr(S[0]+r)}')
    a(f'v_subrev_u32 {vr(vDg)}, 64, {vr(vDg)}')
    a(f's_add_u32 {sr(st1)}, {sr(st1)}, 32768')
    a(f's_sub_u32 {sr(sCnt)}, {sr(sCnt)}, 1')
    a(f's_cmp_lg_u32 {sr(sCnt)}, 0')
    a('s_cbranch_scc1 k2_mx')
    a(f'v_mov_b32 {vr(vNI)}, {vr(vM)}')
    a('s_nop 1')
    a(f'v_permlane32_swap_b32 {vr(vM)}, {vr(vNI)}')
    a('s_nop 1')
    a(f'v_max_f32 {vr(vM)}, {vr(vM)}, {vr(vNI)}')
    for r in range(16): a(f'v_sub_f32 {vr(NEGM+r)}, 0, {vr(vM)}')
    a('s_branch k2_restart')
    a.label('k2_epi')
    a(f'v_rcp_f32 {vr(vL)}, {vr(vL)}')
    a(f'v_sub_f32 {vr(vt)}, 1.0, {vr(vG)}')
    a(f'v_mul_f32 {vr(vL)}, {vr(vL)}, {vr(vt)}')
    a(f's_mul_i32 {sr(st0)}, {sr(sRb)}, {288*1024}')
    a(f's_lshl_b32 {sr(st1)}, {sr(sH)}, 13')
    a(f's_add_u32 {sr(st0)}, {sr(st0)}, {sr(st1)}')
    a(f's_add_u32 {sr(st0)}, {sr(st0)}, {WS_CTX}')
    for db in range(4):
        d = O + 16*db
        for r in range(16): a(f'v_mul_f32 {vr(d+r)}, {vr(vL)}, {vr(d+r)}')
        for g in range(2):
            for q in range(4):
                a(f'v_cvt_pk_bf16_f32 {vr(d+8*g+q)}, {vr(d+8*g+2*q)}, {vr(d+8*g+2*q+1)}')
        if db == 2: a(f's_add_u32 {sr(st0)}, {sr(st0)}, 4096')
        for g in range(2):
            a(f'buffer_store_dwordx4 {vr(d+8*g,4)}, {vr(vL16)}, {sr(sWS,4)}, {sr(st0)} offen offset:{((2*db+g)&3)*1024}')
    a('s_waitcnt vmcnt(0)')
    a.label('k2_end')
    a('s_endpgm')
    kernel_desc(a, name, 236)
    return name
```

```python
from asmlib import *

def gen_k3(a):
    name = 'k3_kernel'
    kernel_header(a, name)
    sWS, sO = 8, 12
    sWave, sRt, sCt = 16, 17, 18
    sB = 20
    st0, st1 = 24, 25
    ACC = 0
    FR = 64
    vL16, vTid, vt = 192, 193, 194
    DEPTH = 8
    a('s_cmp_ge_u32 s2, 256')
    a('s_cbranch_scc1 k3_end')
    make_srd(a, sWS, 104, 0); make_srd(a, sO, 88, 0)
    a(f'v_mov_b32 {vr(vTid)}, v0')
    a(f'v_lshrrev_b32 v1, 6, v0')
    a(f'v_and_b32 {vr(vL16)}, 63, v0')
    a(f'v_lshlrev_b32 {vr(vL16)}, 4, {vr(vL16)}')
    a(f'v_readfirstlane_b32 {sr(sWave)}, v1')
    a(f's_and_b32 {sr(st0)}, s2, 7')
    a(f's_lshr_b32 {sr(st1)}, s2, 3')
    a(f's_and_b32 {sr(sCt)}, {sr(st1)}, 7')
    a(f's_lshr_b32 {sr(st1)}, {sr(st1)}, 3')
    a(f's_lshl_b32 {sr(sRt)}, {sr(st0)}, 2')
    a(f's_add_u32 {sr(sRt)}, {sr(sRt)}, {sr(st1)}')
    a(f's_mul_i32 {sr(st0)}, {sr(sWave)}, {36*1024}')
    a(f's_mul_i32 {sr(sB)}, {sr(sCt)}, {2*288*1024}')
    a(f's_add_u32 {sr(sB)}, {sr(sB)}, {sr(st0)}')
    a(f's_add_u32 {sr(sB)}, {sr(sB)}, {WS_WT}')
    a(f's_add_u32 {sr(sB+1)}, {sr(sB)}, {288*1024}')
    a(f's_mul_i32 {sr(sB+2)}, {sr(sRt)}, {2*288*1024}')
    a(f's_add_u32 {sr(sB+2)}, {sr(sB+2)}, {sr(st0)}')
    a(f's_add_u32 {sr(sB+2)}, {sr(sB+2)}, {WS_CTX}')
    a(f's_add_u32 {sr(sB+3)}, {sr(sB+2)}, {288*1024}')
    a('s_waitcnt lgkmcnt(0)')
    fin_srd(a, sWS, WS_BYTES); fin_srd(a, sO, 2048*1024)
    def loads(k):
        slot = FR + 16*(k % DEPTH)
        for i in range(4):
            a(f'buffer_load_dwordx4 {vr(slot+4*i,4)}, {vr(vL16)}, {sr(sWS,4)}, {sr(sB+i)} offen offset:{(k&3)*1024}')
        if (k & 3) == 3:
            for i in range(4): a(f's_add_u32 {sr(sB+i)}, {sr(sB+i)}, 4096')
    NK = 36
    for k in range(DEPTH): loads(k)
    for k in range(NK):
        rem = min(DEPTH-1, NK-1-k)
        a(f's_waitcnt vmcnt({4*rem})')
        slot = FR + 16*(k % DEPTH)
        for c in range(2):
            for r in range(2):
                d = ACC + 16*(2*c+r)
                a(f'v_mfma_f32_32x32x16_bf16 {vr(d,16)}, {vr(slot+4*c,4)}, {vr(slot+8+4*r,4)}, {"0" if k==0 else vr(d,16)}')
        if k + DEPTH < NK: loads(k+DEPTH)
    a('s_nop 7'); a('s_nop 7')
    a(f's_lshl_b32 {sr(st0)}, {sr(sWave)}, 14')
    a(f'v_add_u32 {vr(vt)}, {sr(st0)}, {vr(vL16)}')
    for blk in range(4):
        for q in range(4):
            a(f'ds_write_b128 {vr(vt)}, {vr(ACC+16*blk+4*q,4)} offset:{blk*4096+q*1024}')
    a('s_waitcnt lgkmcnt(0)')
    a('s_barrier')
    a(f'v_lshrrev_b32 {vr(vt)}, 5, {vr(vTid)}')
    a(f'v_lshlrev_b32 {vr(vt)}, 10, {vr(vt)}')
    a(f'v_and_b32 {vr(vt+1)}, 31, {vr(vTid)}')
    a(f'v_lshl_add_u32 {vr(vt)}, {vr(vt+1)}, 4, {vr(vt)}')
    a(f'v_add_u32 {vr(vt+2)}, 0x10000, {vr(vt)}')
    for wv in range(8):
        base = vt if wv < 4 else vt+2
        o = (wv & 3)*16384
        a(f'ds_read_b128 {vr(8*wv,4)}, {vr(base)} offset:{o}')
        a(f'ds_read_b128 {vr(8*wv+4,4)}, {vr(base)} offset:{o+512}')
    a('s_waitcnt lgkmcnt(0)')
    for wv in range(1, 8):
        for e in range(8):
            a(f'v_add_f32 {vr(e)}, {vr(e)}, {vr(8*wv+e)}')
    for q in range(4):
        a(f'v_cvt_pk_bf16_f32 {vr(q)}, {vr(2*q)}, {vr(2*q+1)}')
    a(f'v_bfe_u32 {vr(vt+2)}, {vr(vTid)}, 7, 1')
    a(f'v_lshl_add_u32 {vr(vt+1)}, {vr(vt+2)}, 5, {vr(vt+1)}')
    a(f'v_lshlrev_b32 {vr(vt+1)}, 10, {vr(vt+1)}')
    a(f'v_lshrrev_b32 {vr(vt+2)}, 8, {vr(vTid)}')
    a(f'v_lshl_add_u32 {vr(vt+1)}, {vr(vt+2)}, 6, {vr(vt+1)}')
    a(f'v_bfe_u32 {vr(vt+2)}, {vr(vTid)}, 5, 2')
    a(f'v_lshl_add_u32 {vr(vt+1)}, {vr(vt+2)}, 4, {vr(vt+1)}')
    a(f's_lshl_b32 {sr(st0)}, {sr(sRt)}, 16')
    a(f's_lshl_b32 {sr(st1)}, {sr(sCt)}, 7')
    a(f's_add_u32 {sr(st0)}, {sr(st0)}, {sr(st1)}')
    a(f'buffer_store_dwordx4 {vr(0,4)}, {vr(vt+1)}, {sr(sO,4)}, {sr(st0)} offen')
    a('s_waitcnt vmcnt(0)')
    a.label('k3_end')
    a('s_endpgm')
    kernel_desc(a, name, 200)
    return name
```

```python
import sys
sys.path.insert(0,'dev')
from asmlib import *
import importlib, k1, k2, k3
HDR = open('gated_mix__linear_kernel_hedgehog__compressed_kv_cla__prompt.s.ref').read().split('; Override launch')[0]
def build():
    a = Asm()
    a.raw(HDR.rstrip('\n'))
    a.raw('; @launch kernel=k1_kernel grid=(256,1,1) block=(512,1,1) lds=132096')
    a.raw('; @launch kernel=k2_kernel grid=(256,1,1) block=(512,1,1) lds=133376')
    a.raw('; @launch kernel=k3_kernel grid=(256,1,1) block=(512,1,1) lds=131072')
    a.raw('.amdgcn_target "amdgcn-amd-amdhsa--gfx950"')
    k1.gen_k1(a); k2.gen_k2(a); k3.gen_k3(a)
    return a.text()
if __name__ == '__main__':
    t = build()
    open('gated_mix__linear_kernel_hedgehog__compressed_kv_cla__prompt.s','w').write(t)
    print(len(t), 'bytes', t.count('\n'), 'lines')
```

```python
import os
STAMP = os.environ.get('STAMP','0')=='1'
class Asm:
    def __init__(self):
        self.lines = []
        self.uid = 0
    def __call__(self, s):
        for ln in s.split('\n'):
            self.lines.append('    ' + ln.strip())
    def label(self, name):
        self.lines.append(name + ':')
    def raw(self, s):
        self.lines.append(s)
    def newlabel(self, p='L'):
        self.uid += 1
        return f'{p}_{self.uid}'
    def text(self):
        return '\n'.join(self.lines) + '\n'

def vr(i, n=1):
    return f'v{i}' if n == 1 else f'v[{i}:{i+n-1}]'
def sr(i, n=1):
    return f's{i}' if n == 1 else f's[{i}:{i+n-1}]'

def mfma(a, d, A, B, C=None):
    if C is None: c = vr(d, 16)
    elif C == 'zero': c = '0'
    else: c = vr(C, 16)
    a(f'v_mfma_f32_32x32x16_bf16 {vr(d,16)}, {vr(A,4)}, {vr(B,4)}, {c}')

def make_srd(a, s, off, nbytes):
    a(f's_load_dwordx2 {sr(s,2)}, s[0:1], {off}')
def fin_srd(a, s, nbytes):
    a(f's_and_b32 {sr(s+1)}, {sr(s+1)}, 0xffff')
    a(f's_mov_b32 {sr(s+2)}, {nbytes}')
    a(f's_mov_b32 {sr(s+3)}, 0x00020000')

def kernel_header(a, name):
    a.raw('.text')
    a.raw(f'.globl {name}')
    a.raw('.p2align 8')
    a.raw(f'.type {name},@function')
    a.label(name)

def kernel_desc(a, name, nvgpr, nsgpr=102):
    if STAMP: nvgpr = 254
    acc = (nvgpr + 3) // 4 * 4
    a.raw('.section .rodata,"a"')
    a.raw('.p2align 6')
    a.raw(f'.amdhsa_kernel {name}')
    a.raw(f'  .amdhsa_next_free_vgpr {nvgpr}')
    a.raw(f'  .amdhsa_next_free_sgpr {nsgpr}')
    a.raw(f'  .amdhsa_accum_offset {acc}')
    a.raw('  .amdhsa_group_segment_fixed_size 0')
    a.raw('  .amdhsa_kernarg_size 112')
    a.raw('  .amdhsa_user_sgpr_count 2')
    a.raw('  .amdhsa_user_sgpr_kernarg_segment_ptr 1')
    a.raw('  .amdhsa_system_sgpr_workgroup_id_x 1')
    a.raw('.end_amdhsa_kernel')

WS_KV   = 0
WS_Q    = 32 << 20
WS_CTX  = 48 << 20
WS_WT   = 68 << 20
WS_PHIQ = 74 << 20
WS_KVP  = 78 << 20
WS_G    = 80 << 20
WS_BYTES = 256 << 20

import os
STAMP = os.environ.get('STAMP','0')=='1'
WS_STAMP = 100<<20
def stamp(a, i):
    if not STAMP: return
    a('s_memtime s[78:79]')
    a('s_waitcnt lgkmcnt(0)')
    a(f's_mov_b32 s{80+i}, s78')
def stamp_flush(a, kidx, n, sWS, sWave):
    if not STAMP: return
    a(f's_lshl_b32 s76, s2, 3')
    a(f's_add_u32 s76, s76, {sr(sWave)}')
    a(f's_lshl_b32 s76, s76, 6')
    a(f's_add_u32 s76, s76, {WS_STAMP + kidx*(1<<20)}')
    a('v_mov_b32 v252, 0')
    for i in range(n):
        a(f'v_mov_b32 v253, s{80+i}')
        a(f'buffer_store_dword v253, v252, {sr(sWS,4)}, s76 offen offset:{4*i}')
    a('s_waitcnt vmcnt(0)')
```

```python
from asmlib import *
import struct, os
QSCALE = 0.127517432
def f2u(x): return struct.unpack('<I', struct.pack('<f', x))[0]
EXP = os.environ.get('EXP', '')
STM = {'a':' nt','b':' sc1','c':' sc0 sc1','d':' sc0 sc1 nt','e':' sc0','p':'','f':' sc1 nt'}.get(os.environ.get('STM','b'),'')

class Trk:
    def __init__(self, a, name): self.a, self.name, self.out = a, name, []
    def issue(self, tag): self.out.append(tag)
    def need(self, tags):
        idx = max([i for i, x in enumerate(self.out) if x in tags], default=-1)
        if idx < 0: return
        n = len(self.out) - 1 - idx
        self.a(f's_waitcnt {self.name}({n})')
        del self.out[:idx+1]
    def drain(self):
        if self.out: self.a(f's_waitcnt {self.name}(0)')
        self.out = []

def gen_f(a):
    name = 'f_kernel'
    kernel_header(a, name)
    sX1, sX2, sW1, sWq, sWA, sWS = 8, 12, 16, 20, 24, 28
    sT = 32
    sWave, sH, sRt = 36, 37, 38
    sXb, sW1b, sWqb, sWAb = 40, 41, 42, 43
    sM, sM2, sM1, sRb = 44, 45, 46, 47
    sTile, sXb2 = 39, 3
    st0, st1, st2, st3 = 48, 49, 50, 51
    sO = 72
    ACC = 0; FR = 128
    vXa = 184; vWa = 192
    vXE, vXO, vW, vA = 196, 197, 198, 199
    vLane, vL16, vG, vTid = 200, 201, 202, 203
    vGF = 204; vGA = 212; hh, nn = 213, 214
    vt = 215
    BIG = 218
    lg = Trk(a, 'lgkmcnt'); vm = Trk(a, 'vmcnt')
    a('s_cmp_ge_u32 s2, 256')
    a('s_cbranch_scc1 f_end')
    make_srd(a, sX1, 40, 0); make_srd(a, sW1, 56, 0)
    a('s_load_dwordx2 s[54:55], s[0:1], 64')
    make_srd(a, sWS, 104, 0)
    make_srd(a, 4, 96, 0)
    make_srd(a, sX2, 0, 0); make_srd(a, sWq, 48, 0); make_srd(a, sWA, 8, 0)
    a('s_load_dwordx2 s[56:57], s[0:1], 72')
    a('s_load_dwordx2 s[58:59], s[0:1], 24')
    a('s_load_dwordx2 s[60:61], s[0:1], 80')
    a('s_load_dwordx2 s[62:63], s[0:1], 16')
    stamp(a, 0)
    a(f'v_lshrrev_b32 v1, 6, v0')
    a(f'v_mov_b32 {vr(vTid)}, v0')
    a(f'v_and_b32 {vr(vLane)}, 63, v0')
    a(f'v_readfirstlane_b32 {sr(sWave)}, v1')
    a(f's_and_b32 {sr(st0)}, s2, 7')
    a(f's_lshr_b32 {sr(st1)}, s2, 3')
    a(f's_lshr_b32 {sr(st2)}, {sr(st1)}, 3')
    a(f's_lshl_b32 {sr(sH)}, {sr(st0)}, 2')
    a(f's_add_u32 {sr(sH)}, {sr(sH)}, {sr(st2)}')
    a(f's_and_b32 {sr(sRt)}, {sr(st1)}, 7')
    if 'same' in EXP:
        a(f's_lshl_b32 {sr(sH)}, {sr(st0)}, 2'); a(f's_mov_b32 {sr(sRt)}, 0')
    if 'nomap' in EXP:
        a(f's_lshr_b32 {sr(sH)}, s2, 3'); a(f's_and_b32 {sr(sRt)}, s2, 7')
    if 'allsame' in EXP:
        a(f's_mov_b32 {sr(sH)}, 0'); a(f's_mov_b32 {sr(sRt)}, 0')
    a(f's_lshl_b32 {sr(sM)}, {sr(sWave)}, 12')
    a(f's_lshl_b32 {sr(sM2)}, {sr(sWave)}, 11')
    a(f's_lshl_b32 {sr(sM1)}, {sr(sWave)}, 10')
    a(f's_sub_u32 {sr(st0)}, 15, {sr(sRt)}')
    a(f's_cmp_lt_u32 {sr(sWave)}, 4')
    a(f's_cselect_b32 {sr(sTile)}, {sr(st0)}, {sr(sRt)}')
    a(f's_lshl_b32 {sr(sRb)}, {sr(sTile)}, 2')
    a(f's_and_b32 {sr(st0)}, {sr(sWave)}, 3')
    a(f's_add_u32 {sr(sRb)}, {sr(sRb)}, {sr(st0)}')
    a(f's_lshl_b32 {sr(sXb2)}, {sr(sRb)}, 15')
    l = vr(vLane)
    t = [vr(FR+i) for i in range(8)]
    a(f'v_lshrrev_b32 {t[0]}, 3, {l}')
    a(f'v_and_b32 {t[1]}, 7, {l}')
    a(f'v_lshrrev_b32 {t[2]}, 4, {l}')
    a(f'v_xor_b32 {t[3]}, {t[1]}, {t[2]}')
    a(f'v_lshlrev_b32 {t[3]}, 4, {t[3]}')
    a(f'v_lshl_add_u32 {vr(vXE)}, {t[0]}, 10, {t[3]}')
    a(f'v_xor_b32 {vr(vXO)}, 64, {vr(vXE)}')
    a(f'v_and_b32 {t[2]}, 1, {t[2]}')
    a(f'v_lshlrev_b32 {t[2]}, 2, {t[2]}')
    a(f'v_xor_b32 {t[1]}, {t[1]}, {t[2]}')
    a(f'v_lshlrev_b32 {t[3]}, 4, {t[1]}')
    a(f'v_lshl_add_u32 {vr(vW)}, {t[0]}, 13, {t[3]}')
    a(f'v_mul_u32_u24 {vr(vA)}, 3072, {t[0]}')
    a(f'v_lshrrev_b32 {t[2]}, 1, {t[1]}')
    a(f'v_lshl_add_u32 {vr(vA)}, {t[2]}, 10, {vr(vA)}')
    a(f'v_and_b32 {t[2]}, 1, {t[1]}')
    a(f'v_lshl_add_u32 {vr(vA)}, {t[2]}, 4, {vr(vA)}')
    a(f'v_mov_b32 {t[3]}, 0x40000000')
    a(f'v_cmp_lt_u32 vcc, 5, {t[1]}')
    a(f'v_lshlrev_b32 {vr(vL16)}, 4, {l}')
    a(f'v_lshrrev_b32 {vr(hh)}, 5, {l}')
    a(f'v_cndmask_b32 {vr(vA)}, {vr(vA)}, {t[3]}, vcc')
    a(f'v_and_b32 {vr(nn)}, 31, {l}')
    a(f's_lshl_b32 {sr(sXb)}, {sr(sRt)}, 18')
    a(f's_lshl_b32 {sr(st0)}, {sr(sWave)}, 15')
    a(f's_add_u32 {sr(sXb)}, {sr(sXb)}, {sr(st0)}')
    a(f's_and_b32 {sr(st0)}, {sr(sWave)}, 1')
    a(f's_lshl_b32 {sr(sW1b)}, {sr(st0)}, 18')
    a(f's_lshl_b32 {sr(st1)}, {sr(sH)}, 8')
    a(f's_add_u32 {sr(sW1b)}, {sr(sW1b)}, {sr(st1)}')
    a(f's_bfe_u32 {sr(st0)}, {sr(sWave)}, 0x10001')
    a(f's_lshl_b32 {sr(st0)}, {sr(st0)}, 7')
    a(f's_add_u32 {sr(sW1b)}, {sr(sW1b)}, {sr(st0)}')
    a(f's_and_b32 {sr(st0)}, {sr(sWave)}, 3')
    a(f's_lshl_b32 {sr(sWqb)}, {sr(st0)}, 17')
    a(f's_add_u32 {sr(sWqb)}, {sr(sWqb)}, {sr(st1)}')
    a(f's_lshr_b32 {sr(st0)}, {sr(sWave)}, 2')
    a(f's_lshl_b32 {sr(st0)}, {sr(st0)}, 7')
    a(f's_add_u32 {sr(sWqb)}, {sr(sWqb)}, {sr(st0)}')
    a(f's_mul_i32 {sr(sWAb)}, {sr(sWave)}, {8*3072}')
    a(f's_lshl_b32 {sr(st0)}, {sr(sH)}, 5')
    a(f's_add_u32 {sr(sWAb)}, {sr(sWAb)}, {sr(st0)}')
    a('s_waitcnt lgkmcnt(0)')
    fin_srd(a, sX1, 2048*1024)
    a(f's_cmp_lt_u32 {sr(sWave)}, 4')
    a(f's_cselect_b32 {sr(sW1)}, {sr(sW1)}, s54')
    a(f's_cselect_b32 {sr(sW1+1)}, {sr(sW1+1)}, s55')
    fin_srd(a, sW1, 512*8192)

    def dma_items(s):
        buf = (s & 1) * 65536; p2 = s >= 8; st = s & 7
        X = sX2 if p2 else sX1
        it = []
        for j in range(4):
            it.append([f's_add_u32 m0, {sr(sM)}, {buf + j*1024}', f's_add_u32 {sr(st0)}, {sr(sXb2 if p2 else sXb)}, {st*128 + j*8192}',
                       f'buffer_load_dwordx4 {vr(vXE if j%2==0 else vXO)}, {sr(X,4)}, {sr(st0)} offen lds'])
        if not p2:
            for j in range(4):
                it.append([f's_add_u32 m0, {sr(sM)}, {buf+32768+j*1024}', f's_add_u32 {sr(st0)}, {sr(sW1b)}, {st*64*8192 + j*8*8192}',
                           f'buffer_load_dwordx4 {vr(vW)}, {sr(sW1,4)}, {sr(st0)} offen lds'])
        else:
            for j in range(2):
                it.append([f's_add_u32 m0, {sr(sM2)}, {buf+32768+j*1024}', f's_add_u32 {sr(st0)}, {sr(sWqb)}, {st*64*8192 + j*8*8192}',
                           f'buffer_load_dwordx4 {vr(vW)}, {sr(sWq,4)}, {sr(st0)} offen lds'])
            it.append([f's_add_u32 m0, {sr(sM1)}, {buf+32768+16384}', f's_add_u32 {sr(st0)}, {sr(sWAb)}, {st*64*3072}',
                       f'buffer_load_dwordx4 {vr(vA)}, {sr(sWA,4)}, {sr(st0)} offen lds'])
        if 'nodma' in EXP and s >= 2: it = []
        return [(x, f'dma{s}') for x in it]
    def emit_vm(item):
        ins, tag = item
        for x in ins: a(x)
        vm.issue(tag)
    for it in dma_items(0): emit_vm(it)
    fin_srd(a, sX2, 2048*1024); fin_srd(a, sWq, 512*8192); fin_srd(a, sWA, 512*3072); fin_srd(a, sWS, WS_BYTES); fin_srd(a, 4, 256)
    a(f's_mov_b32 {sr(sT)}, s60'); a(f's_mov_b32 {sr(sT+1)}, s61'); fin_srd(a, sT, 1024)
    emit_vm((['s_mov_b32 m0, 131072', 's_nop 0', f'buffer_load_dwordx4 {vr(vL16)}, {sr(sT,4)}, 0 offen lds'], 'dma0'))
    LDS_WP = 156672
    a(f's_mov_b32 {sr(sT)}, s62'); a(f's_mov_b32 {sr(sT+1)}, s63'); fin_srd(a, sT, 32*512)
    a(f's_lshl_b32 {sr(st3)}, {sr(sH)}, 9')
    emit_vm(([f's_mov_b32 m0, {LDS_WP}', 's_nop 0', f'buffer_load_dwordx4 {vr(vL16)}, {sr(sT,4)}, {sr(st3)} offen lds'], 'dma0'))
    for it in dma_items(1): emit_vm(it)

    vPX, vPW, vPQ_, vPA_, vPD = 250, 251, 215, 216, 252
    a(f's_lshr_b32 s64, s2, 3')
    a(f's_lshl_b32 s65, s64, 16')
    a(f's_lshl_b32 s66, {sr(sWave)}, 7')
    a(f's_add_u32 s95, s65, s66')
    a(f'v_lshlrev_b32 {vr(vPX)}, 10, {l}')
    a(f's_and_b32 s65, {sr(sWave)}, 3')
    a(f's_lshl_b32 s66, s64, 2')
    a(f's_add_u32 s65, s65, s66')
    a(f's_lshl_b32 s65, s65, 15')
    a(f's_and_b32 s66, s2, 7')
    a(f's_lshl_b32 s66, s66, 10')
    a(f's_add_u32 s96, s65, s66')
    a(f'v_lshrrev_b32 {t[0]}, 3, {l}')
    a(f'v_and_b32 {t[1]}, 7, {l}')
    a(f'v_lshlrev_b32 {vr(vPW)}, 13, {t[0]}')
    a(f'v_lshl_add_u32 {vr(vPW)}, {t[1]}, 7, {vr(vPW)}')
    a(f'v_mov_b32 {t[2]}, 0x40000000')
    a(f'v_cmp_lt_u32 s[68:69], 15, {l}')
    a(f'v_cmp_lt_u32 vcc, 31, {l}')
    a('s_nop 0')
    a(f'v_cndmask_b32 {vr(vPQ_)}, {vr(vPW)}, {t[2]}, s[68:69]')
    a(f'v_cndmask_b32 {vr(vPW)}, {vr(vPW)}, {t[2]}, vcc')
    a(f's_lshl_b32 s65, s64, 3')
    a(f's_add_u32 s65, s65, {sr(sWave)}')
    a(f's_lshl_b32 s97, s65, 14')
    a(f's_add_u32 s97, s97, s66')
    a(f'v_lshrrev_b32 {t[0]}, 2, {l}')
    a(f'v_mul_u32_u24 {t[0]}, 3072, {t[0]}')
    a(f'v_and_b32 {t[1]}, 3, {l}')
    a(f'v_lshl_add_u32 {vr(vPA_)}, {t[1]}, 10, {t[0]}')
    a(f'v_cmp_eq_u32 s[68:69], 3, {t[1]}')
    a(f'v_cmp_lt_u32 vcc, 7, {l}')
    a(f's_mul_i32 s98, s65, {2*3072}')
    a(f's_lshr_b32 s66, s66, 3')
    a(f's_add_u32 s98, s98, s66')
    a(f'v_cndmask_b32 {vr(vPA_)}, {vr(vPA_)}, {t[2]}, s[68:69]')
    a(f'v_cndmask_b32 {vr(vPA_)}, {vr(vPA_)}, {t[2]}, vcc')
    pf1 = [('vm', ([f'buffer_load_dword {vr(vPD)}, {vr(vPX)}, {sr(sX1,4)}, s95 offen'], 'pf')),
           ('vm', ([f'buffer_load_dword {vr(vPD)}, {vr(vPW)}, {sr(sW1,4)}, s96 offen'], 'pf'))]
    pf2 = [('vm', ([f'buffer_load_dword {vr(vPD)}, {vr(vPX)}, {sr(sX2,4)}, s95 offen'], 'pf')),
           ('vm', ([f'buffer_load_dword {vr(vPD)}, {vr(vPQ_)}, {sr(sWq,4)}, s97 offen'], 'pf')),
           ('vm', ([f'buffer_load_dword {vr(vPD)}, {vr(vPA_)}, {sr(sWA,4)}, s98 offen'], 'pf'))]
    if 'nopf' in EXP: pf1, pf2 = [], []
    for k_, it in pf1: emit_vm(it)
    LDS_WT = 132096
    vWT, vWTr = BIG, BIG+1
    a(f'v_lshrrev_b32 {vr(vWT)}, 2, {l}')
    a(f'v_lshlrev_b32 {vr(vWT)}, 10, {vr(vWT)}')
    a(f'v_and_b32 {t[0]}, 3, {l}')
    a(f'v_lshl_add_u32 {vr(vWT)}, {t[0]}, 4, {vr(vWT)}')
    a(f'v_bfe_u32 {t[1]}, {l}, 2, 2')
    a(f'v_lshl_add_u32 {t[1]}, {vr(hh)}, 2, {t[1]}')
    a(f'v_lshlrev_b32 {t[1]}, 6, {t[1]}')
    a(f'v_bfe_u32 {t[2]}, {l}, 4, 1')
    a(f'v_lshl_add_u32 {t[1]}, {t[2]}, 5, {t[1]}')
    a(f'v_lshl_add_u32 {t[1]}, {t[0]}, 3, {t[1]}')
    a(f's_mul_i32 s99, {sr(sWave)}, 3072')
    a(f's_add_u32 s99, s99, {LDS_WT}')
    a(f'v_add_u32 {vr(vWTr)}, s99, {t[1]}')
    a(f's_lshr_b32 s64, s2, 4')
    a(f's_and_b32 s65, s2, 15')
    a(f's_mul_i32 s65, s65, 18')
    a(f's_add_u32 s65, s65, {sr(sWave)}')
    wt_ld, wt_st = [], []
    for it in range(3):
        pre = [f's_add_u32 s66, s65, {8*it}', f's_cmp_lt_u32 s66, 256',
               f's_cselect_b32 {sr(sT)}, s56, s58', f's_cselect_b32 {sr(sT+1)}, s57, s59', f's_cselect_b32 s67, 0, 256',
               f's_cselect_b32 {sr(sT+2)}, 8, 1', f's_lshl_b32 {sr(sT+2)}, {sr(sT+2)}, 19',
               f's_and_b32 {sr(sT+1)}, {sr(sT+1)}, 0xffff', f's_mov_b32 {sr(sT+3)}, 0x00020000',
               f's_sub_u32 s67, s66, s67', f's_lshl_b32 s67, s67, 14', f's_lshl_b32 s68, s64, 6', f's_add_u32 s67, s67, s68',
               f's_mul_i32 s68, s64, 288', f's_add_u32 s68, s68, s66', f's_lshl_b32 s68, s68, 10', f's_add_u32 {sr(92+it)}, s68, {WS_WT}']
        if it == 2:
            pre += [f's_cmp_ge_u32 {sr(sWave)}, 2', f's_cselect_b32 s67, 0x40000000, s67', f's_cselect_b32 {sr(92+it)}, 0x40000000, {sr(92+it)}']
        pre += [f's_add_u32 m0, s99, {it*1024}', 's_nop 0']
        wt_ld.append(('vm', (pre + [f'buffer_load_dwordx4 {vr(vWT)}, {sr(sT,4)}, s67 offen lds'], 'wt')))
        base = BIG + 4 + 4*it
        wt_st.append([('v', f'ds_read_b64_tr_b16 {vr(base,2)}, {vr(vWTr)} offset:{it*1024}'),
                      ('v', f'ds_read_b64_tr_b16 {vr(base+2,2)}, {vr(vWTr)} offset:{it*1024+512}')])
        wt_st[-1].append(f'buffer_store_dwordx4 {vr(base,4)}, {vr(vL16)}, {sr(sWS,4)}, {sr(92+it)} offen')
    stamp(a, 1)
    a(f'v_lshrrev_b32 {t[0]}, 1, {vr(nn)}')
    a(f'v_and_b32 {t[0]}, 7, {t[0]}')
    a(f'v_xor_b32 {t[0]}, {t[0]}, {vr(hh)}')
    a(f'v_lshlrev_b32 {t[0]}, 4, {t[0]}')
    a(f'v_lshl_add_u32 {t[6]}, {vr(nn)}, 7, {t[0]}')
    a(f'v_bfe_u32 {t[1]}, {l}, 2, 2')
    a(f'v_lshl_add_u32 {t[2]}, {vr(hh)}, 3, {t[1]}')
    a(f'v_lshlrev_b32 {t[2]}, 7, {t[2]}')
    a(f'v_bfe_u32 {t[3]}, {l}, 4, 1')
    a(f'v_lshlrev_b32 {t[3]}, 5, {t[3]}')
    a(f'v_and_b32 {t[4]}, 3, {l}')
    a(f'v_lshl_add_u32 {t[3]}, {t[4]}, 3, {t[3]}')
    a(f'v_lshrrev_b32 {t[4]}, 1, {t[1]}')
    a(f'v_lshlrev_b32 {t[4]}, 6, {t[4]}')
    a(f'v_xor_b32 {t[3]}, {t[3]}, {t[4]}')
    a(f'v_add_u32 {t[7]}, {t[2]}, {t[3]}')
    sXP1, sWP1 = 52, 53
    a(f's_bfe_u32 {sr(sXP1)}, {sr(sWave)}, 0x10001')
    a(f's_lshl_b32 {sr(sXP1)}, {sr(sXP1)}, 14')
    a(f's_lshr_b32 {sr(st1)}, {sr(sWave)}, 2')
    a(f's_lshl_b32 {sr(st1)}, {sr(st1)}, 1')
    a(f's_and_b32 {sr(st2)}, {sr(sWave)}, 1')
    a(f's_add_u32 {sr(st1)}, {sr(st1)}, {sr(st2)}')
    a(f's_lshl_b32 {sr(st1)}, {sr(st1)}, 13')
    a(f's_add_u32 {sr(sWP1)}, {sr(st1)}, 32768')
    for b in range(2):
        for ks in range(4):
            a(f'v_xor_b32 {vr(vXa+4*b+ks)}, {32*ks}, {t[6]}')
            a(f'v_add_u32 {vr(vXa+4*b+ks)}, {sr(sXP1)}, {vr(vXa+4*b+ks)}')
            if b: a(f'v_add_u32 {vr(vXa+4*b+ks)}, 0x10000, {vr(vXa+4*b+ks)}')
        for cb in range(2):
            a(f'v_xor_b32 {vr(vWa+2*b+cb)}, {64*cb}, {t[7]}')
            a(f'v_add_u32 {vr(vWa+2*b+cb)}, {sr(sWP1)}, {vr(vWa+2*b+cb)}')
            if b: a(f'v_add_u32 {vr(vWa+2*b+cb)}, 0x10000, {vr(vWa+2*b+cb)}')
    a(f'v_lshlrev_b32 {vr(vG)}, 4, {vr(hh)}')
    a(f'v_add_u32 {vr(vG)}, 131072, {vr(vG)}')
    a(f'v_mov_b32 {vr(vGA)}, 0')
    a(f's_lshl_b32 {sr(st0)}, {sr(sH)}, 20')
    a(f's_lshl_b32 {sr(st1)}, {sr(sRt)}, 17')
    a(f's_add_u32 {sr(st0)}, {sr(st0)}, {sr(st1)}')
    a(f's_bfe_u32 {sr(st1)}, {sr(sWave)}, 0x10001')
    a(f's_lshl_b32 {sr(st1)}, {sr(st1)}, 16')
    a(f's_add_u32 {sr(st0)}, {sr(st0)}, {sr(st1)}')
    a(f's_and_b32 {sr(st1)}, {sr(sWave)}, 1')
    a(f's_cmp_lt_u32 {sr(sWave)}, 4')
    a(f's_cselect_b32 {sr(st2)}, 12, 11')
    a(f's_lshl_b32 {sr(st1)}, {sr(st1)}, {sr(st2)}')
    a(f's_add_u32 {sr(st0)}, {sr(st0)}, {sr(st1)}')
    a(f's_cselect_b32 {sr(st1)}, 0, 16384')
    a(f's_cmp_lt_u32 {sr(sWave)}, 4')
    a(f's_cselect_b32 {sr(st1)}, 0, 16384')
    a(f's_add_u32 {sr(sO)}, {sr(st0)}, {sr(st1)}')
    a(f's_cmp_lt_u32 {sr(sWave)}, 4')
    a(f's_cselect_b32 {sr(st1)}, 1, 4')
    a(f's_cselect_b32 {sr(st2)}, 2, 1')
    a(f's_lshl_b32 {sr(st1)}, {sr(st1)}, 10')
    a(f's_lshl_b32 {sr(st2)}, {sr(st2)}, 10')
    a(f's_add_u32 {sr(sO+1)}, {sr(sO)}, {sr(st1)}')
    a(f's_add_u32 {sr(sO+2)}, {sr(sO)}, {sr(st2)}')
    a(f's_add_u32 {sr(sO+3)}, {sr(sO+2)}, {sr(st1)}')

    def p1_reads(s, ks, fs):
        b = s & 1; f = FR + 28*fs; out = []
        def W(cb): return [(f'ds_read_b64_tr_b16 {vr(f+16+4*cb+2*h2,2)}, {vr(vWa+2*b+cb)} offset:{ks*2048+h2*512}', f'W{cb}_{fs}') for h2 in range(2)]
        def X(rb): return [(f'ds_read_b128 {vr(f+4*rb,4)}, {vr(vXa+4*b+ks)} offset:{rb*4096}', f'X{rb}_{fs}')]
        return W(0) + X(0) + W(1) + X(1) + X(2) + X(3)
    def p2_reads(s, ks, fs):
        b = s & 1; f = FR + 28*fs
        out = [(f'ds_read_b128 {vr(f,4)}, {vr(vXa+4*b+ks)}', f'X_{fs}')]
        for blk in range(6):
            grp, cb = blk >> 1, blk & 1
            for h2 in range(2):
                out.append((f'ds_read_b64_tr_b16 {vr(f+4+4*blk+2*h2,2)}, {vr(vWa+2*b+cb)} offset:{grp*8192+ks*2048+h2*512}', f'W{blk}_{fs}'))
            if blk == 1 and 'nodot' not in EXP: out.append((f'ds_read_b128 {vr(vGF+4*fs,4)}, {vr(vG)} offset:{(s&7)*128+ks*32}', f'G_{fs}'))
        if 'fewrd' in EXP: out = [o for o in out if o[1][:2] not in ('W2','W3','W4')]
        if 'b128' in EXP:
            o2 = []
            for o in out:
                if 'tr_b16' in o[0]:
                    if o2 and o2[-1][1] == o[1] and o2[-1][2]: o2.pop();
                    else:
                        import re
                        m = re.match(r'ds_read_b64_tr_b16 v\[(\d+):\d+\], (v\d+) offset:(\d+)', o[0])
                        o2.append((f'ds_read_b128 v[{m.group(1)}:{int(m.group(1))+3}], {vr(vXa+4*b+ks)} offset:{m.group(3)}', o[1], True)); o2.append(o2[-1]);
                        o2.pop()
                        continue
                else: o2.append((o[0], o[1], False))
            seen=set(); out=[]
            for o in o2:
                k=(o[1])
                if k in seen: continue
                seen.add(k); out.append((o[0],o[1]))
        return out
    def emit_rd(r): a(r[0]); lg.issue(r[1])
    def M(d, A, B, c0):
        return f'v_mfma_f32_32x32x16_bf16 {vr(d,16)}, {vr(A,4)}, {vr(B,4)}, {"0" if c0 else vr(d,16)}'

    def phase(p, kwave, side):
        s0 = 0 if p == 1 else 8
        for s in range(s0, s0+8):
            for ks in range(4):
                fs = ks & 1; f = FR + 28*fs
                first = (s == s0 and ks == 0); last = (ks == 3)
                q = list(side.get((s, ks), []))
                if last:
                    lg.drain()
                    if s + 1 < 16:
                        vm.need({f'dma{s+1}'})
                        a('s_barrier')
                    if s + 2 < 16: q = [('vm', it) for it in dma_items(s+2)] + q
                    ns, nks = s+1, 0
                else:
                    ns, nks = s, ks+1
                if ns >= 16 or (p == 1 and ns == 8): rd = []
                else: rd = (p1_reads if p == 1 else p2_reads)(ns, nks, 1-fs)
                mf = []
                if p == 1:
                    for rb in range(4):
                        for cb in range(2):
                            d = ACC + 16*(2*rb+cb); X = f+4*rb; W = f+16+4*cb
                            mf.append((M(d, W, X, first) if kwave else M(d, X, W, first), {f'X{rb}_{fs}', f'W{cb}_{fs}'}))
                    rper = 2
                else:
                    X = f
                    for blk in range(5): mf.append((M(ACC+16*blk, f+4+4*blk, X, first), {f'X_{fs}', f'W{blk}_{fs}'}))
                    mf.append((M(ACC+80, X, f+24, first), {f'X_{fs}', f'W5_{fs}'}))
                    rper = 3
                n = len(mf)
                qper = -(-len(q)//n) if q else 0
                for i, (m, need) in enumerate(mf):
                    lg.need(need)
                    a(m)
                    for r in rd[i*rper:(i+1)*rper]: emit_rd(r)
                    for kind, it in q[i*qper:(i+1)*qper]:
                        if kind == 'vm': emit_vm(it)
                        elif kind == 'vmneed': vm.need(it)
                        elif kind == 'lg': emit_rd(it)
                        elif kind == 'lgneed': lg.need(it)
                        else: a(it)
                    if p == 2 and 2 <= i < 6 and 'nodot' not in EXP:
                        if i == 2: lg.need({f'G_{fs}'})
                        a(f'v_dot2c_f32_bf16 {vr(vGA)}, {vr(X+i-2)}, {vr(vGF+4*fs+i-2)}')

    vm.need({'dma0'})
    a('s_barrier')
    stamp(a, 2)
    for r in p1_reads(0, 0, 0): emit_rd(r)
    side1 = {}
    side1[(2, 0)] = wt_ld
    side1[(3, 0)] = pf2
    side1[(4, 0)] = [('vmneed', {'wt'})] + [('lg', (ins, 'wtr')) for w_ in wt_st for (k_, ins) in w_[:2]]
    side1[(4, 2)] = [('lgneed', {'wtr'})] + [('vm', ([w_[2]], 'wtst')) for w_ in wt_st]
    a(f's_cmp_lt_u32 {sr(sWave)}, 4')
    a('s_cbranch_scc0 f_vwave')
    sv_lg, sv_vm = list(lg.out), list(vm.out)
    phase(1, True, side1)
    a('s_branch f_p2')
    a.label('f_vwave')
    e_lg, e_vm = list(lg.out), list(vm.out)
    lg.out, vm.out = list(sv_lg), list(sv_vm)
    phase(1, False, side1)
    assert lg.out == e_lg and vm.out == e_vm
    a.label('f_p2')
    stamp(a, 3)
    a(f's_sub_u32 {sr(st0)}, {sr(sM)}, {sr(sXP1)}')
    a(f's_sub_u32 {sr(st1)}, 32768, {sr(sWP1)}')
    for i in range(8): a(f'v_add_u32 {vr(vXa+i)}, {sr(st0)}, {vr(vXa+i)}')
    for i in range(4): a(f'v_add_u32 {vr(vWa+i)}, {sr(st1)}, {vr(vWa+i)}')
    for r in p2_reads(8, 0, 0): emit_rd(r)
    a('s_nop 3')
    dst = {6: BIG, 7: BIG+8, 0: BIG+16, 1: BIG+24, 2: 96, 3: 104, 4: 112, 5: 120}
    for blk in (6, 7, 0, 1, 2, 3, 4, 5):
        for q_ in range(8):
            a(f'v_cvt_pk_bf16_f32 {vr(dst[blk]+q_)}, {vr(ACC+16*blk+2*q_)}, {vr(ACC+16*blk+2*q_+1)}')
    stamp(a, 4)
    side2 = {}
    stores = []
    for blk in (2, 3, 4, 5, 6, 7, 0, 1):
        rb, cb = blk >> 1, blk & 1
        for g in range(2):
            if 'nost' not in EXP: stores.append(('vm', ([f's_add_u32 {sr(st1)}, {sr(sO+2*cb+g)}, {(rb>>1)*32768 + (rb&1)*8192}',
                                   f'buffer_store_dwordx4 {vr(dst[blk]+4*g,4)}, {vr(vL16)}, {sr(sWS,4)}, {sr(st1)} offen{STM}'], 'p1st')))
    sched = {8: 3, 9: 3, 10: 2, 11: 2, 12: 2, 13: 2, 14: 2}
    k_ = 0
    for st_, cnt in sched.items():
        lst = stores[k_:k_+cnt]; k_ += cnt
        side2[(st_, 0)] = lst[:(cnt+1)//2]; side2[(st_, 1)] = lst[(cnt+1)//2:]
    ID = 104
    c0, c1 = 217, 252
    idq = [('v', f'v_lshlrev_b32 {vr(vt+1)}, 2, {vr(hh)}'), ('v', f'v_sub_u32 {vr(vt+1)}, {vr(nn)}, {vr(vt+1)}'),
           ('v', f'v_mov_b32 {vr(c0)}, 0x3f80'), ('v', f'v_mov_b32 {vr(c1)}, 0x3f800000')]
    for g in range(2):
        for q_ in range(4):
            k_lo = 16*g + 8*(q_ >> 1) + 2*(q_ & 1)
            idq += [('v', f'v_cmp_eq_u32 s[64:65], {k_lo}, {vr(vt+1)}'), ('v', f'v_cmp_eq_u32 s[66:67], {k_lo+1}, {vr(vt+1)}'),
                    ('v', f'v_mov_b32 {vr(ID+4*g+q_)}, 0'), ('v', 's_nop 0'),
                    ('v', f'v_cndmask_b32 {vr(ID+4*g+q_)}, {vr(ID+4*g+q_)}, {vr(c0)}, s[64:65]'),
                    ('v', f'v_cndmask_b32 {vr(ID+4*g+q_)}, {vr(ID+4*g+q_)}, {vr(c1)}, s[66:67]')]
    n = len(idq); per = -(-n//6)
    keys = [(11, 2), (12, 2), (13, 2), (14, 2), (15, 0), (15, 1)]
    for i, k in enumerate(keys): side2[k] = idq[i*per:(i+1)*per]
    phase(2, None, side2)
    stamp(a, 5)
    a('s_waitcnt vmcnt(0)')
    a('s_barrier')
    a(f's_lshl_b32 {sr(st0)}, {sr(sH)}, 3')
    a(f'v_mov_b32 v222, {sr(st0)}')
    a('v_mov_b32 v223, 1')
    a(f's_cmp_lg_u32 {sr(sWave)}, 0')
    a('s_cbranch_scc1 f_noat')
    a('s_mov_b64 s[64:65], exec')
    a('s_mov_b64 exec, 1')
    a('buffer_atomic_add v223, v222, s[4:7], 0 offen sc1')
    a('s_mov_b64 exec, s[64:65]')
    a.label('f_noat')
    QK = ACC+64; VA = ACC+80
    QF, KF, VF, WP = 112, 116, 120, BIG
    MT = 160; PQP = 242
    a(f'v_bfe_u32 {vr(vt)}, {l}, 2, 2')
    a(f'v_lshl_add_u32 {vr(vt)}, {vr(hh)}, 2, {vr(vt)}')
    a(f'v_lshlrev_b32 {vr(vt)}, 5, {vr(vt)}')
    a(f'v_and_b32 {vr(vt+1)}, 3, {l}')
    a(f'v_lshl_add_u32 {vr(vt)}, {vr(vt+1)}, 3, {vr(vt)}')
    a(f'v_add_u32 {vr(vt)}, {LDS_WP}, {vr(vt)}')
    a(f'ds_read_b64_tr_b16 {vr(WP,2)}, {vr(vt)}')
    a(f'ds_read_b64_tr_b16 {vr(WP+2,2)}, {vr(vt)} offset:256')
    a(f'v_cmp_lt_u32 vcc, 15, {vr(nn)}')
    a(f'v_mov_b32 {vr(vt)}, 0x80008000')
    a(f'v_mov_b32 {vr(vt+1)}, 0')
    a(f'v_cndmask_b32 {vr(vt)}, {vr(vt+1)}, {vr(vt)}, vcc')
    a('s_waitcnt lgkmcnt(0)')
    for q_ in range(4): a(f'v_xor_b32 {vr(WP+q_)}, {vr(WP+q_)}, {vr(vt)}')
    a('s_nop 3')
    for q_ in range(4):
        a(f'v_cvt_pk_bf16_f32 {vr(QF+q_)}, {vr(QK+2*q_)}, {vr(QK+2*q_+1)}')
        a(f'v_cvt_pk_bf16_f32 {vr(KF+q_)}, {vr(QK+8+2*q_)}, {vr(QK+8+2*q_+1)}')
    PQ, PK = BIG+8, QK
    a('s_nop 1')
    mfma(a, PQ, WP, QF, 'zero'); mfma(a, PK, WP, KF, 'zero')
    a(f's_mov_b32 s70, {hex(f2u(QSCALE))}'); a(f's_mov_b32 s71, {hex(f2u(QSCALE))}')
    for db in range(4):
        d = ACC+16*db
        for r in range(8): a(f'v_pk_mul_f32 {vr(d+2*r,2)}, {vr(d+2*r,2)}, s[70:71]')
        for g in range(2):
            for q_ in range(4):
                a(f'v_cvt_pk_bf16_f32 {vr(128+4*(2*db+g)+q_)}, {vr(d+8*g+2*q_)}, {vr(d+8*g+2*q_+1)}')
    stamp(a, 6)
    a(f'v_and_b32 {vr(vt)}, 27, {vr(nn)}')
    a(f'v_cmp_eq_u32 vcc, 16, {vr(vt)}')
    a(f'v_mov_b32 {vr(vt+1)}, 0x3f803f80')
    for q_ in range(8): a(f'v_cvt_pk_bf16_f32 {vr(VF+q_)}, {vr(VA+2*q_)}, {vr(VA+2*q_+1)}')
    for q_ in range(8): a(f'v_cndmask_b32 {vr(VF+q_)}, {vr(VF+q_)}, {vr(vt+1)}, vcc')
    L2E = 0x3fb8aa3b
    a(f's_mov_b32 s69, {hex(L2E)}')
    chains = [(PQ, MT), (PQ+8, MT+2), (PK, MT+4), (PK+8, MT+6)]
    gat = MT+8
    def each(fn):
        for b, m in chains: fn(b, m)
    each(lambda b, m: a(f'v_max3_f32 {vr(m)}, {vr(b)}, {vr(b+1)}, {vr(b+2)}'))
    each(lambda b, m: a(f'v_max3_f32 {vr(m)}, {vr(m)}, {vr(b+3)}, {vr(b+4)}'))
    each(lambda b, m: a(f'v_max3_f32 {vr(m)}, {vr(m)}, {vr(b+5)}, {vr(b+6)}'))
    each(lambda b, m: a(f'v_max_f32 {vr(m)}, {vr(m)}, {vr(b+7)}'))
    each(lambda b, m: a(f'v_mov_b32 {vr(m+1)}, {vr(m)}'))
    a(f'v_mov_b32 {vr(gat)}, {vr(vGA)}')
    a('s_nop 0')
    each(lambda b, m: a(f'v_permlane32_swap_b32 {vr(m)}, {vr(m+1)}'))
    a(f'v_permlane32_swap_b32 {vr(vGA)}, {vr(gat)}')
    a('s_nop 0')
    each(lambda b, m: a(f'v_max_f32 {vr(m)}, {vr(m)}, {vr(m+1)}'))
    a(f'v_add_f32 {vr(vGA)}, {vr(vGA)}, {vr(gat)}')
    each(lambda b, m: a(f'v_mul_f32 {vr(m)}, 0xbfb8aa3b, {vr(m)}'))
    a(f'v_mul_f32 {vr(vGA)}, 0xbfb8aa3b, {vr(vGA)}')
    for b, m in chains:
        for r in range(8): a(f'v_fma_f32 {vr(b+r)}, {vr(b+r)}, s69, {vr(m)}')
    a(f'v_exp_f32 {vr(vGA)}, {vr(vGA)}')
    for b, m in chains:
        for r in range(8): a(f'v_exp_f32 {vr(b+r)}, {vr(b+r)}')
    a(f'v_add_f32 {vr(vGA)}, 1.0, {vr(vGA)}')
    each(lambda b, m: a(f'v_add_f32 {vr(m)}, {vr(b)}, {vr(b+1)}'))
    for r in range(2, 8): each(lambda b, m: a(f'v_add_f32 {vr(m)}, {vr(m)}, {vr(b+r)}'))
    each(lambda b, m: a(f'v_mov_b32 {vr(m+1)}, {vr(m)}'))
    a(f'v_rcp_f32 {vr(vGA)}, {vr(vGA)}')
    a('s_nop 0')
    each(lambda b, m: a(f'v_permlane32_swap_b32 {vr(m)}, {vr(m+1)}'))
    a('s_nop 0')
    each(lambda b, m: a(f'v_add_f32 {vr(m)}, {vr(m)}, {vr(m+1)}'))
    each(lambda b, m: a(f'v_rcp_f32 {vr(m)}, {vr(m)}'))
    a('s_nop 0')
    for b, m in chains:
        for r in range(8): a(f'v_mul_f32 {vr(b+r)}, {vr(m)}, {vr(b+r)}')
    a(f's_cmp_lg_u32 {sr(sWave)}, 0')
    a('s_cbranch_scc1 f_nopoll')
    a('buffer_load_dword v224, v222, s[4:7], 0 offen sc1')
    a.label('f_nopoll')
    for g in range(2):
        for q_ in range(4):
            a(f'v_cvt_pk_bf16_f32 {vr(PK+8*g+q_)}, {vr(PK+8*g+2*q_)}, {vr(PK+8*g+2*q_+1)}')
    TT = ACC+0
    a('s_nop 0')
    mfma(a, TT, PK, ID, 'zero'); mfma(a, TT, PK+8, ID+4)
    for g in range(2):
        for q_ in range(4):
            a(f'v_cvt_pk_bf16_f32 {vr(PQP+4*g+q_)}, {vr(PQ+8*g+2*q_)}, {vr(PQ+8*g+2*q_+1)}')
    a('s_nop 7'); a('s_nop 3')
    for g in range(2):
        for q_ in range(4):
            a(f'v_cvt_pk_bf16_f32 {vr(TT+8*g+q_)}, {vr(TT+8*g+2*q_)}, {vr(TT+8*g+2*q_+1)}')
    KZ = ACC+16
    a('s_nop 1')
    mfma(a, KZ, TT, VF, 'zero'); mfma(a, KZ, TT+8, VF+4)
    a(f'v_add_u32 {vr(vt)}, {sr(sM)}, {vr(vL16)}')
    a(f'v_bfe_u32 {vr(MT)}, {vr(vTid)}, 1, 2')
    a(f'v_lshlrev_b32 {vr(MT)}, 10, {vr(MT)}')
    a(f'v_lshrrev_b32 {vr(MT+1)}, 3, {vr(vTid)}')
    a(f'v_lshl_add_u32 {vr(MT)}, {vr(MT+1)}, 4, {vr(MT)}')
    a(f'v_and_b32 {vr(MT+1)}, 1, {vr(vTid)}')
    a(f'v_lshl_add_u32 {vr(MT)}, {vr(MT+1)}, 3, {vr(MT)}')
    a(f's_lshl_b32 {sr(st0)}, {sr(sH)}, 15')
    a(f's_lshl_b32 {sr(st1)}, {sr(sRt)}, 12')
    a(f's_add_u32 {sr(st0)}, {sr(st0)}, {sr(st1)}')
    a(f's_add_u32 {sr(st0)}, {sr(st0)}, {WS_KVP}')
    a(f'v_lshlrev_b32 {vr(MT+2)}, 3, {vr(vTid)}')
    a('s_nop 7'); a('s_nop 1')
    for q_ in range(4):
        a(f'ds_write_b128 {vr(vt)}, {vr(KZ+4*q_,4)} offset:{q_*1024}')
    a(f'v_mov_b32 {vr(vt)}, 131072'); a(f'v_mov_b32 {vr(vt+1)}, 0')
    a(f'ds_write_b32 {vr(vt)}, {vr(vt+1)}')
    a(f's_cmp_lg_u32 {sr(sWave)}, 0')
    a('s_cbranch_scc1 f_sync_done')
    stamp(a, 1)
    a('s_mov_b32 s66, 40000')
    a.label('f_spin')
    a('s_waitcnt vmcnt(0)')
    a('v_readfirstlane_b32 s67, v224')
    a('s_cmp_ge_u32 s67, 8')
    a('s_cbranch_scc1 f_spin_out')
    a('buffer_load_dword v224, v222, s[4:7], 0 offen sc1')
    a('s_sub_u32 s66, s66, 1')
    a('s_cmp_lg_u32 s66, 0')
    a('s_cbranch_scc1 f_spin')
    a('s_waitcnt vmcnt(0)')
    a.label('f_spin_out')
    stamp(a, 4)
    a('buffer_inv sc1')
    a.label('f_sync_done')
    a('s_waitcnt lgkmcnt(0)')
    a('s_barrier')
    for wv in range(8):
        a(f'ds_read_b64 {vr(ACC+32+2*wv,2)}, {vr(MT)} offset:{wv*4096}')
    a('s_waitcnt lgkmcnt(0)')
    for stp in (4, 2, 1):
        for wv in range(stp):
            a(f'v_pk_add_f32 {vr(ACC+32+2*wv,2)}, {vr(ACC+32+2*wv,2)}, {vr(ACC+32+2*(wv+stp),2)}')
    a(f'buffer_store_dwordx2 {vr(ACC+32,2)}, {vr(MT+2)}, {sr(sWS,4)}, {sr(st0)} offen{STM}')
    a('v_mov_b32 v215, v212'); a('v_mov_b32 v216, v203'); a('v_mov_b32 v217, v200'); a('v_mov_b32 v214, v201')
    stamp(a, 7)
    a('s_waitcnt vmcnt(0)')
    a('s_barrier')
    a(f's_cmp_lg_u32 {sr(sWave)}, 0')
    a('s_cbranch_scc1 f_noat2')
    a('s_mov_b64 s[64:65], exec')
    a('s_mov_b64 exec, 1')
    a('buffer_atomic_add v223, v222, s[4:7], 0 offen offset:4 sc1')
    a('s_mov_b64 exec, s[64:65]')
    a.label('f_noat2')
    stamp(a, 8)
    import f_b
    f_b.gen_attn(a)
    stamp_flush(a, 0, 12, sWS, sWave)
    a.label('f_end')
    a('s_endpgm')
    kernel_desc(a, name, 252)
    return name
```

```python
from asmlib import *

import os
EXP=os.environ.get('EXP','')
def gen_attn(a):
    sWS = 28
    sWave, sH, sJ, sTile, sRb = 36, 37, 38, 39, 47
    sT, sTA, sIsB, sWl, sKg, sMK, sCnt, sFb, sKg0 = 8, 9, 10, 11, 12, 13, 14, 15, 16
    st0, st1, st2 = 17, 18, 19
    sMsk = 20
    O = 0; S = [64, 96]; Q = 128; NEGM = 160; F = [176, 192]
    vKa, vVa = 208, 209
    vL = 210
    vDa, vDb, vL16, vG = 212, 213, 214, 215
    vTid, vLane = 216, 217
    vt = 218
    LDS_FLAG = 131072; LDS_KZ = 131072 + 256
    a(f's_lshr_b32 {sr(sIsB)}, {sr(sWave)}, 2')
    a(f's_and_b32 {sr(sWl)}, {sr(sWave)}, 3')
    a(f's_sub_u32 {sr(st0)}, 15, {sr(sJ)}')
    a(f's_lshl_b32 {sr(sT)}, {sr(sTile)}, 1')
    a(f's_add_u32 {sr(sT)}, {sr(sT)}, 2')
    a(f's_lshl_b32 {sr(sTA)}, {sr(st0)}, 1')
    a(f's_add_u32 {sr(sTA)}, {sr(sTA)}, 2')
    a(f's_lshl_b32 {sr(sKg0)}, {sr(sH)}, 20')
    a(f's_lshl_b32 {sr(st0)}, {sr(sWl)}, 12')
    a(f's_add_u32 {sr(sKg0)}, {sr(sKg0)}, {sr(st0)}')
    a(f's_mov_b32 {sr(sFb)}, 0')
    PH = 242
    a(f'v_and_b32 {vr(vt+1)}, 31, {vr(vLane)}')
    a(f'v_lshrrev_b32 {vr(vt+3)}, 5, {vr(vLane)}')
    a(f'v_lshlrev_b32 {vr(vt+3)}, 2, {vr(vt+3)}')
    a(f'v_sub_u32 {vr(vDa)}, {vr(vt+1)}, {vr(vt+3)}')
    a(f's_lshl_b32 {sr(st0)}, {sr(sWl)}, 5')
    a(f'v_add_u32 {vr(vDa)}, {sr(st0)}, {vr(vDa)}')
    a(f'v_subrev_u32 {vr(vDb)}, 64, {vr(vDa)}')
    for r in range(16): a(f'v_mov_b32 {vr(NEGM+r)}, 0')

    def dma4(soff_reg, soff_add, m0_reg, m0_add):
        a(f's_add_u32 m0, {sr(m0_reg)}, {m0_add}')
        a(f's_add_u32 {sr(st2)}, {sr(soff_reg)}, {soff_add}')
        for i in range(4):
            a(f'buffer_load_dwordx4 {vr(vL16)}, {sr(sWS,4)}, {sr(st2)} offen offset:{i*1024} lds')
    def prologue_dma():
        a(f's_lshl_b32 {sr(sMK)}, {sr(sWl)}, 12')
        dma4(sKg0, 0, sMK, 0)
        dma4(sKg0, 32768, sMK, 32768)
        dma4(sKg0, 16384, sMK, 16384)
        dma4(sKg0, 32768+16384, sMK, 32768+16384)
        dma4(sKg0, 65536, sMK, 65536)
        dma4(sKg0, 65536+16384, sMK, 65536+16384)
        dma4(sKg0, 98304, sMK, 98304)
        a(f's_add_u32 {sr(sKg)}, {sr(sKg0)}, {4*32768}')
    sPh = 40
    a(f's_lshl_b32 {sr(sPh)}, {sr(sIsB)}, 2')
    a.label('fa_restart')
    a(f's_cmp_eq_u32 {sr(sIsB)}, 0')
    a('s_cbranch_scc1 fa_ra')
    prologue_dma()
    a.label('fa_ra')
    a('s_waitcnt vmcnt(16)')
    a('s_barrier')
    a.label('fa_start')
    stamp(a,9)

    def M(d, A, B, C):
        a(f'v_mfma_f32_32x32x16_bf16 {vr(d,16)}, {vr(A,4)}, {vr(B,4)}, {vr(C,16)}')
    def kread(f, addr, kb, t): return f'ds_read_b128 {vr(f,4)}, {vr(addr)} offset:{kb*8192+t*1024}'
    def vread(f, addr, s, db): return f'ds_read_b128 {vr(f,4)}, {vr(addr)} offset:{16384+s*4096+db*1024}'

    def chunk_ops(Sb, kb, qt, vDm):
        b = Sb + 16*kb + 4*qt; b8 = Sb + 16*kb + 8*(qt >> 1); d = b8 + 2*(qt & 1)
        g = [[], [], [], []]
        g[0] += [f'v_exp_f32 {vr(b)}, {vr(b)}', f'v_exp_f32 {vr(b+1)}, {vr(b+1)}']
        g[1] += [f'v_exp_f32 {vr(b+2)}, {vr(b+2)}', f'v_exp_f32 {vr(b+3)}, {vr(b+3)}']
        if vDm is not None:
            for e in range(4):
                g[e >> 1].append(f'v_cmp_le_i32 {sr(sMsk+2*e,2)}, {32*kb+8*qt+e}, {vr(vDm)}')
            for e in range(4):
                g[2].append(f'v_cndmask_b32 {vr(b+e)}, 0, {vr(b+e)}, {sr(sMsk+2*e,2)}')
        if 'pkadd' in EXP:
            g[2] += [f'v_pk_add_f32 {vr(vL,2)}, {vr(vL,2)}, {vr(b,2)}', f'v_pk_add_f32 {vr(vL,2)}, {vr(vL,2)}, {vr(b+2,2)}']
        elif 'bal' in EXP and vDm is None:
            g = [[f'v_exp_f32 {vr(b)}, {vr(b)}', f'v_exp_f32 {vr(b+1)}, {vr(b+1)}'],
                 [f'v_exp_f32 {vr(b+2)}, {vr(b+2)}', f'v_add_f32 {vr(vL)}, {vr(vL)}, {vr(b)}', f'v_add_f32 {vr(vL+1)}, {vr(vL+1)}, {vr(b+1)}'],
                 [f'v_exp_f32 {vr(b+3)}, {vr(b+3)}', f'v_add_f32 {vr(vL)}, {vr(vL)}, {vr(b+2)}', f'v_cvt_pk_bf16_f32 {vr(d)}, {vr(b)}, {vr(b+1)}'],
                 [f'v_add_f32 {vr(vL+1)}, {vr(vL+1)}, {vr(b+3)}', f'v_cvt_pk_bf16_f32 {vr(d+1)}, {vr(b+2)}, {vr(b+3)}']]
            if 'noexp' in EXP: g = [[o for o in x if 'exp' not in o] for x in g]
            if 'novalu' in EXP: g = [[], [], [], []]
            return g
        else:
            g[2] += [f'v_add_f32 {vr(vL+(e&1))}, {vr(vL+(e&1))}, {vr(b+e)}' for e in range(4)]
        g[3] += [f'v_cvt_pk_bf16_f32 {vr(d)}, {vr(b)}, {vr(b+1)}', f'v_cvt_pk_bf16_f32 {vr(d+1)}, {vr(b+2)}, {vr(b+3)}']
        return g

    for r in range(64): a(f'v_mov_b32 {vr(O+r)}, 0')
    a(f'v_mov_b32 {vr(vL)}, 0'); a(f'v_mov_b32 {vr(vL+1)}, 0')
    a(f'v_mov_b32 {vr(vKa)}, {vr(vL16)}')
    for i in range(4): a(kread(F[0]+4*i, vKa, 0, i))
    for i in range(4): a(kread(F[1]+4*i, vKa, 0, 4+i))
    for g in range(4):
        kb, t0 = g >> 1, 4*(g & 1)
        a('s_waitcnt lgkmcnt(4)' if g < 3 else 's_waitcnt lgkmcnt(0)')
        for i in range(4):
            d = S[0] + 16*kb
            M(d, F[g & 1]+4*i, Q+4*(t0+i), NEGM if (t0+i) == 0 else d)
            if g < 2: a(kread(F[g & 1]+4*i, vKa, 1, t0+i))
    a(f'v_mov_b32 {vr(vVa)}, {vr(vKa)}')
    a(f'v_add_u32 {vr(vKa)}, 32768, {vr(vKa)}')
    for i in range(4): a(kread(F[0]+4*i, vKa, 0, i))
    for i in range(4): a(vread(F[1]+4*i, vVa, 0, i))
    a(f's_sub_u32 {sr(st0)}, {sr(sT)}, 2')
    a(f's_lshl_b32 {sr(st0)}, {sr(st0)}, 6')
    a(f'v_add_u32 {vr(vt)}, {sr(st0)}, {vr(vDa)}')
    a('s_nop 4')
    for qt in range(4):
        for gl in chunk_ops(S[0], 0, qt, vt):
            for op in gl: a(op)
            a('s_nop 1')
    a(f's_sub_u32 {sr(sCnt)}, {sr(sT)}, 4')
    a(f's_lshr_b32 {sr(sCnt)}, {sr(sCnt)}, 1')
    a(f's_cmp_eq_u32 {sr(sT)}, 2')
    a('s_cbranch_scc1 fa_V2')

    def sync_point(tag):
        a('s_waitcnt vmcnt(8)')
        a('s_barrier')
        a(f's_cmp_eq_u32 {sr(sIsB)}, 0')
        a(f's_cbranch_scc1 fa_nd_{tag}')
        a(f's_add_u32 {sr(st1)}, {sr(sMK)}, 98304')
        a(f's_and_b32 {sr(st1)}, {sr(st1)}, 0x1ffff')
        dma4(sKg, -16384 & 0xffffffff, st1, 16384)
        dma4(sKg, 0, sMK, 0)
        a(f's_add_u32 {sr(sKg)}, {sr(sKg)}, 32768')
        a(f's_add_u32 {sr(sMK)}, {sr(sMK)}, 32768')
        a(f's_and_b32 {sr(sMK)}, {sr(sMK)}, 0x1ffff')
        a.label(f'fa_nd_{tag}')

    def iteration(par, tag, mask_cur, mask_next, do_qk, next_k, next_v, entry):
        cur, nxt = S[par], S[1-par]
        out = list(entry)
        def wait(setname):
            idx = max([i for i, x in enumerate(out) if x == setname], default=-1)
            if idx < 0: return
            n = len(out) - 1 - idx
            a(f's_waitcnt lgkmcnt({n})')
            del out[:idx+1]
        for g in range(8):
            isqk = (g % 2 == 0)
            fs = g & 1; f = F[fs]
            if g == 6:
                sync_point(tag)
                if next_k or next_v:
                    a(f'v_mov_b32 {vr(vt+1)}, {vr(vKa)}')
                    a(f'v_add_u32 {vr(vKa)}, 32768, {vr(vKa)}')
                    a(f'v_and_b32 {vr(vKa)}, 0x1ffff, {vr(vKa)}')
            if g == 7 and (next_k or next_v):
                a(f'v_mov_b32 {vr(vVa)}, {vr(vt+1)}')
            if g < 4: ch = chunk_ops(cur, 1, g, vDm(mask_cur))
            elif do_qk: ch = chunk_ops(nxt, 0, g-4, vDm(mask_next))
            else: ch = None
            active = do_qk or not isqk
            if active: wait(f'F{fs}')
            for i in range(4):
                rd = None
                if isqk:
                    if do_qk:
                        kb, t0 = g >> 2, 4*((g >> 1) & 1)
                        d = nxt + 16*kb
                        M(d, f+4*i, Q+4*(t0+i), NEGM if (t0+i) == 0 else d)
                        if g < 6:
                            g2 = g+2; rd = kread(f+4*i, vKa, g2 >> 2, 4*((g2 >> 1) & 1)+i)
                        elif next_k: rd = kread(f+4*i, vKa, 0, i)
                else:
                    s = g >> 1
                    M(O+16*i, f+4*i, cur+16*(s >> 1)+8*(s & 1), O+16*i)
                    if g < 7: rd = vread(f+4*i, vVa, s+1, i)
                    elif next_v: rd = vread(f+4*i, vVa, 0, i)
                if rd:
                    if 'nods' not in EXP or tag not in ('e','o'): a(rd)
                    out.append(f'F{fs}')
                if ch:
                    for op in ch[i]: a(op)
                    if not active and i < 3: a('s_nop 0')
        return out
    def vDm(m): return {None: None, 'a': vDa, 'b': vDb}[m]
    full = ['F0']*4 + ['F1']*4
    a.label('fa_loop')
    a(f's_cmp_lt_u32 {sr(sPh)}, 4')
    a('s_cbranch_scc1 fa_side')
    a.label('fa_loop_b')
    o = iteration(0, 'e', None, None, True, True, True, full); assert o == full, o
    a(f's_cmp_eq_u32 {sr(sCnt)}, 0')
    a('s_cbranch_scc1 fa_V1')
    o = iteration(1, 'o', None, None, True, True, True, full); assert o == full
    a(f's_sub_u32 {sr(sCnt)}, {sr(sCnt)}, 1')
    a('s_branch fa_loop')
    a.label('fa_V1')
    o = iteration(1, 'v1', None, 'a', True, True, True, full); assert o == full
    a.label('fa_V2')
    o = iteration(0, 'v2', 'a', 'b', True, False, True, full); assert o == ['F1']*4, o
    o = iteration(1, 'v3', 'b', None, False, False, False, o); assert o == [], o
    stamp(a,10)
    a(f's_cmp_eq_u32 {sr(sIsB)}, 0')
    a('s_cbranch_scc1 fa_fin')
    a(f's_sub_u32 {sr(sCnt)}, {sr(sTA)}, {sr(sT)}')
    a.label('fa_ld')
    sync_point('ld')
    a(f's_sub_u32 {sr(sCnt)}, {sr(sCnt)}, 1')
    a(f's_cmp_lg_u32 {sr(sCnt)}, 0')
    a('s_cbranch_scc1 fa_ld')
    a.label('fa_fin')
    pass
    a('s_waitcnt vmcnt(0)')
    a(f'v_add_f32 {vr(vL)}, {vr(vL)}, {vr(vL+1)}')
    a(f'v_mov_b32 {vr(vL+1)}, {vr(vL)}')
    a('s_nop 1')
    a(f'v_permlane32_swap_b32 {vr(vL)}, {vr(vL+1)}')
    a('s_nop 1')
    a(f'v_add_f32 {vr(vL)}, {vr(vL)}, {vr(vL+1)}')
    a(f's_cmp_lg_u32 {sr(sFb)}, 0')
    a('s_cbranch_scc1 fa_epi')
    a(f'v_mov_b32 {vr(vt)}, 0x21800000')
    a(f'v_mov_b32 {vr(vt+1)}, 0x5d800000')
    a(f'v_cmp_ge_f32 {sr(sMsk,2)}, {vr(vL)}, {vr(vt)}')
    a(f'v_cmp_le_f32 {sr(sMsk+2,2)}, {vr(vL)}, {vr(vt+1)}')
    a('s_nop 1')
    a(f's_and_b64 {sr(sMsk,2)}, {sr(sMsk,2)}, {sr(sMsk+2,2)}')
    a(f's_not_b64 {sr(sMsk,2)}, {sr(sMsk,2)}')
    a(f's_cmp_eq_u64 {sr(sMsk,2)}, 0')
    a('s_cbranch_scc1 fa_ok')
    a(f'v_mov_b32 {vr(vt)}, {LDS_FLAG}')
    a(f'v_mov_b32 {vr(vt+1)}, 1')
    a(f'ds_write_b32 {vr(vt)}, {vr(vt+1)}')
    a.label('fa_ok')
    a('s_waitcnt lgkmcnt(0)')
    a('s_barrier')
    a(f'v_mov_b32 {vr(vt)}, {LDS_FLAG}')
    a(f'ds_read_b32 {vr(vt+1)}, {vr(vt)}')
    a('s_waitcnt lgkmcnt(0)')
    a(f'v_readfirstlane_b32 {sr(st0)}, {vr(vt+1)}')
    a(f's_cmp_eq_u32 {sr(st0)}, 0')
    a('s_cbranch_scc1 fa_epi')
    a(f's_mov_b32 {sr(sFb)}, 1')
    vM = vt+2; vDg = vt+3; vNI = vt+4
    a(f'v_mov_b32 {vr(vM)}, 0xff7fffff')
    a(f'v_mov_b32 {vr(vNI)}, 0xff7fffff')
    a(f's_sub_u32 {sr(st0)}, {sr(sT)}, 2')
    a(f's_lshl_b32 {sr(st0)}, {sr(st0)}, 6')
    a(f'v_add_u32 {vr(vDg)}, {sr(st0)}, {vr(vDa)}')
    a(f's_lshl_b32 {sr(st1)}, {sr(sH)}, 20')
    a(f's_mov_b32 {sr(sCnt)}, {sr(sT)}')
    a.label('fa_mx')
    for kb in range(2):
        for t in range(8):
            a(f's_add_u32 {sr(st2)}, {sr(st1)}, {kb*8192 + t*1024}')
            a(f'buffer_load_dwordx4 {vr(O+4*t,4)}, {vr(vL16)}, {sr(sWS,4)}, {sr(st2)} offen')
        a('s_waitcnt vmcnt(0)')
        for t in range(8):
            a(f'v_mfma_f32_32x32x16_bf16 {vr(S[0],16)}, {vr(O+4*t,4)}, {vr(Q+4*t,4)}, {"0" if t==0 else vr(S[0],16)}')
        a('s_nop 7'); a('s_nop 7')
        for r in range(16):
            a(f'v_cmp_le_i32 vcc, {32*kb + 8*(r >> 2) + (r & 3)}, {vr(vDg)}')
            a('s_nop 1')
            a(f'v_cndmask_b32 {vr(S[0]+r)}, {vr(vNI)}, {vr(S[0]+r)}, vcc')
            a(f'v_max_f32 {vr(vM)}, {vr(vM)}, {vr(S[0]+r)}')
    a(f'v_subrev_u32 {vr(vDg)}, 64, {vr(vDg)}')
    a(f's_add_u32 {sr(st1)}, {sr(st1)}, 32768')
    a(f's_sub_u32 {sr(sCnt)}, {sr(sCnt)}, 1')
    a(f's_cmp_lg_u32 {sr(sCnt)}, 0')
    a('s_cbranch_scc1 fa_mx')
    a(f'v_mov_b32 {vr(vNI)}, {vr(vM)}')
    a('s_nop 1')
    a(f'v_permlane32_swap_b32 {vr(vM)}, {vr(vNI)}')
    a('s_nop 1')
    a(f'v_max_f32 {vr(vM)}, {vr(vM)}, {vr(vNI)}')
    for r in range(16): a(f'v_sub_f32 {vr(NEGM+r)}, 0, {vr(vM)}')
    a('s_branch fa_restart')
    a.label('fa_epi')
    a(f'v_add_u32 {vr(vt+4)}, {LDS_KZ}, {vr(vL16)}')
    a(f'ds_read_b128 {vr(64,4)}, {vr(vt+4)}')
    a(f'ds_read_b128 {vr(68,4)}, {vr(vt+4)} offset:1024')
    a('s_waitcnt lgkmcnt(0)')
    mfma(a, 80, 64, PH, 'zero'); mfma(a, 80, 68, PH+4)
    a(f'v_rcp_f32 {vr(vL)}, {vr(vL)}')
    a(f'v_sub_f32 {vr(vt)}, 1.0, {vr(vG)}')
    a(f'v_mul_f32 {vr(vL)}, {vr(vL)}, {vr(vt)}')
    a(f's_mul_i32 {sr(st0)}, {sr(sRb)}, {288*1024}')
    a(f's_lshl_b32 {sr(st1)}, {sr(sH)}, 13')
    a(f's_add_u32 {sr(st0)}, {sr(st0)}, {sr(st1)}')
    a(f's_add_u32 {sr(st0)}, {sr(st0)}, {WS_CTX}')
    for db in range(4):
        d = O + 16*db
        for r in range(16): a(f'v_mul_f32 {vr(d+r)}, {vr(vL)}, {vr(d+r)}')
        for g in range(2):
            for q in range(4):
                a(f'v_cvt_pk_bf16_f32 {vr(d+8*g+q)}, {vr(d+8*g+2*q)}, {vr(d+8*g+2*q+1)}')
        if db == 2: a(f's_add_u32 {sr(st0)}, {sr(st0)}, 4096')
        for g in range(2):
            a(f'buffer_store_dwordx4 {vr(d+8*g,4)}, {vr(vL16)}, {sr(sWS,4)}, {sr(st0)} offen offset:{((2*db+g)&3)*1024}')
    a(f'v_add_f32 {vr(88)}, 0x358637bd, {vr(88)}')
    a(f'v_rcp_f32 {vr(88)}, {vr(88)}')
    a(f's_mul_i32 {sr(st0)}, {sr(sRb)}, {288*1024}')
    a(f'v_mul_f32 {vr(88)}, {vr(vG)}, {vr(88)}')
    a(f's_lshl_b32 {sr(st1)}, {sr(sH)}, 10')
    for r in range(8): a(f'v_mul_f32 {vr(80+r)}, {vr(88)}, {vr(80+r)}')
    for q in range(4): a(f'v_cvt_pk_bf16_f32 {vr(80+q)}, {vr(80+2*q)}, {vr(80+2*q+1)}')
    a(f's_add_u32 {sr(st0)}, {sr(st0)}, {sr(st1)}')
    a(f's_add_u32 {sr(st0)}, {sr(st0)}, {WS_CTX + 256*1024}')
    a(f'buffer_store_dwordx4 {vr(80,4)}, {vr(vL16)}, {sr(sWS,4)}, {sr(st0)} offen')
    a('s_waitcnt vmcnt(0)')
    stamp(a,11)
    a('s_branch fa_done')
    a.label('fa_side')
    a(f's_cmp_eq_u32 {sr(sPh)}, 1'); a('s_cbranch_scc1 fa_s1')
    a(f's_cmp_eq_u32 {sr(sPh)}, 2'); a('s_cbranch_scc1 fa_s2')
    a(f's_cmp_eq_u32 {sr(sPh)}, 3'); a('s_cbranch_scc1 fa_s3')
    def kvp_loads(r0):
        a(f's_lshl_b32 {sr(st0)}, {sr(sH)}, 15')
        a(f's_add_u32 {sr(st0)}, {sr(st0)}, {WS_KVP + r0*4096}')
        for rt in range(4):
            if rt: a(f's_add_u32 {sr(st0)}, {sr(st0)}, 4096')
            a(f'buffer_load_dwordx4 {vr(222+4*rt,4)}, {vr(221)}, {sr(sWS,4)}, {sr(st0)} offen sc1')
    a(f's_lshl_b32 {sr(st0)}, {sr(sH)}, 3')
    a(f'v_mov_b32 {vr(221)}, {sr(st0)}')
    a(f'buffer_load_dword {vr(220)}, {vr(221)}, s[4:7], 0 offen offset:4 sc1')
    a(f's_mov_b32 {sr(sPh)}, 1'); a('s_branch fa_loop_b')
    a.label('fa_s1')
    a(f's_mov_b32 {sr(st1)}, 40000')
    a.label('fa_s1_spin')
    a('s_waitcnt vmcnt(0)')
    a(f'v_readfirstlane_b32 {sr(st0)}, {vr(220)}')
    a(f's_cmp_ge_u32 {sr(st0)}, 8')
    a('s_cbranch_scc1 fa_s1_ok')
    a(f'buffer_load_dword {vr(220)}, {vr(221)}, s[4:7], 0 offen offset:4 sc1')
    a(f's_sub_u32 {sr(st1)}, {sr(st1)}, 1')
    a(f's_cmp_lg_u32 {sr(st1)}, 0')
    a('s_cbranch_scc1 fa_s1_spin')
    a('s_waitcnt vmcnt(0)')
    a.label('fa_s1_ok')
    a(f'v_lshlrev_b32 {vr(221)}, 4, {vr(vTid)}')
    kvp_loads(0)
    a(f's_mov_b32 {sr(sPh)}, 2'); a('s_branch fa_loop_b')
    a.label('fa_s2')
    a('s_waitcnt vmcnt(0)')
    for e in range(4):
        a(f'v_add_f32 {vr(238+e)}, {vr(222+e)}, {vr(226+e)}')
        a(f'v_add_f32 {vr(230+e)}, {vr(230+e)}, {vr(234+e)}')
    for e in range(4): a(f'v_add_f32 {vr(238+e)}, {vr(238+e)}, {vr(230+e)}')
    kvp_loads(4)
    a(f's_mov_b32 {sr(sPh)}, 3'); a('s_branch fa_loop_b')
    a.label('fa_s3')
    a('s_waitcnt vmcnt(0)')
    for e in range(4):
        a(f'v_add_f32 {vr(222+e)}, {vr(222+e)}, {vr(226+e)}')
        a(f'v_add_f32 {vr(230+e)}, {vr(230+e)}, {vr(234+e)}')
    for e in range(4): a(f'v_add_f32 {vr(238+e)}, {vr(238+e)}, {vr(222+e)}')
    for e in range(4): a(f'v_add_f32 {vr(238+e)}, {vr(238+e)}, {vr(230+e)}')
    a(f'v_cvt_pk_bf16_f32 {vr(238)}, {vr(238)}, {vr(239)}')
    a(f'v_cvt_pk_bf16_f32 {vr(239)}, {vr(240)}, {vr(241)}')
    a(f'v_bfe_u32 {vr(222)}, {vr(vTid)}, 1, 1')
    a(f'v_lshlrev_b32 {vr(222)}, 10, {vr(222)}')
    a(f'v_lshrrev_b32 {vr(223)}, 2, {vr(vTid)}')
    a(f'v_lshl_add_u32 {vr(222)}, {vr(223)}, 4, {vr(222)}')
    a(f'v_and_b32 {vr(223)}, 1, {vr(vTid)}')
    a(f'v_lshl_add_u32 {vr(222)}, {vr(223)}, 3, {vr(222)}')
    a(f'v_add_u32 {vr(222)}, {LDS_KZ}, {vr(222)}')
    a(f'ds_write_b64 {vr(222)}, {vr(238,2)}')
    a('s_waitcnt lgkmcnt(0)')
    a(f's_mov_b32 {sr(sPh)}, 4'); a('s_branch fa_loop_b')
    a.label('fa_done')
```

```python
from asmlib import *

def gen_k3(a):
    name = 'k3_kernel'
    kernel_header(a, name)
    sWS, sO = 8, 12
    sWave, sRt, sCt = 16, 17, 18
    sB = 20
    st0, st1 = 24, 25
    ACC = 0
    FR = 64
    vL16, vTid, vt = 192, 193, 194
    DEPTH = 8
    a('s_cmp_ge_u32 s2, 256')
    a('s_cbranch_scc1 k3_end')
    make_srd(a, sWS, 104, 0); make_srd(a, sO, 88, 0)
    stamp(a,0)
    a(f'v_mov_b32 {vr(vTid)}, v0')
    a(f'v_lshrrev_b32 v1, 6, v0')
    a(f'v_and_b32 {vr(vL16)}, 63, v0')
    a(f'v_lshlrev_b32 {vr(vL16)}, 4, {vr(vL16)}')
    a(f'v_readfirstlane_b32 {sr(sWave)}, v1')
    a(f's_and_b32 {sr(st0)}, s2, 7')
    a(f's_lshr_b32 {sr(st1)}, s2, 3')
    a(f's_and_b32 {sr(sCt)}, {sr(st1)}, 7')
    a(f's_lshr_b32 {sr(st1)}, {sr(st1)}, 3')
    a(f's_lshl_b32 {sr(sRt)}, {sr(st0)}, 2')
    a(f's_add_u32 {sr(sRt)}, {sr(sRt)}, {sr(st1)}')
    a(f's_mul_i32 {sr(st0)}, {sr(sWave)}, {36*1024}')
    a(f's_mul_i32 {sr(sB)}, {sr(sCt)}, {2*288*1024}')
    a(f's_add_u32 {sr(sB)}, {sr(sB)}, {sr(st0)}')
    a(f's_add_u32 {sr(sB)}, {sr(sB)}, {WS_WT}')
    a(f's_add_u32 {sr(sB+1)}, {sr(sB)}, {288*1024}')
    a(f's_mul_i32 {sr(sB+2)}, {sr(sRt)}, {2*288*1024}')
    a(f's_add_u32 {sr(sB+2)}, {sr(sB+2)}, {sr(st0)}')
    a(f's_add_u32 {sr(sB+2)}, {sr(sB+2)}, {WS_CTX}')
    a(f's_add_u32 {sr(sB+3)}, {sr(sB+2)}, {288*1024}')
    a('s_waitcnt lgkmcnt(0)')
    fin_srd(a, sWS, WS_BYTES); fin_srd(a, sO, 2048*1024)
    def loads(k):
        slot = FR + 16*(k % DEPTH)
        for i in range(4):
            a(f'buffer_load_dwordx4 {vr(slot+4*i,4)}, {vr(vL16)}, {sr(sWS,4)}, {sr(sB+i)} offen offset:{(k&3)*1024}')
        if (k & 3) == 3:
            for i in range(4): a(f's_add_u32 {sr(sB+i)}, {sr(sB+i)}, 4096')
    NK = 36
    for k in range(DEPTH): loads(k)
    stamp(a,1)
    for k in range(NK):
        rem = min(DEPTH-1, NK-1-k)
        a(f's_waitcnt vmcnt({4*rem})')
        slot = FR + 16*(k % DEPTH)
        for c in range(2):
            for r in range(2):
                d = ACC + 16*(2*c+r)
                a(f'v_mfma_f32_32x32x16_bf16 {vr(d,16)}, {vr(slot+4*c,4)}, {vr(slot+8+4*r,4)}, {"0" if k==0 else vr(d,16)}')
        if k + DEPTH < NK: loads(k+DEPTH)
    stamp(a,2)
    a('s_nop 7'); a('s_nop 7')
    a(f's_lshl_b32 {sr(st0)}, {sr(sWave)}, 14')
    a(f'v_add_u32 {vr(vt)}, {sr(st0)}, {vr(vL16)}')
    for blk in range(4):
        for q in range(4):
            a(f'ds_write_b128 {vr(vt)}, {vr(ACC+16*blk+4*q,4)} offset:{blk*4096+q*1024}')
    a('s_waitcnt lgkmcnt(0)')
    a('s_barrier')
    stamp(a,3)
    a(f'v_lshrrev_b32 {vr(vt)}, 5, {vr(vTid)}')
    a(f'v_lshlrev_b32 {vr(vt)}, 10, {vr(vt)}')
    a(f'v_and_b32 {vr(vt+1)}, 31, {vr(vTid)}')
    a(f'v_lshl_add_u32 {vr(vt)}, {vr(vt+1)}, 4, {vr(vt)}')
    a(f'v_add_u32 {vr(vt+2)}, 0x10000, {vr(vt)}')
    for wv in range(8):
        base = vt if wv < 4 else vt+2
        o = (wv & 3)*16384
        a(f'ds_read_b128 {vr(8*wv,4)}, {vr(base)} offset:{o}')
        a(f'ds_read_b128 {vr(8*wv+4,4)}, {vr(base)} offset:{o+512}')
    a('s_waitcnt lgkmcnt(0)')
    for wv in range(1, 8):
        for e in range(8):
            a(f'v_add_f32 {vr(e)}, {vr(e)}, {vr(8*wv+e)}')
    for q in range(4):
        a(f'v_cvt_pk_bf16_f32 {vr(q)}, {vr(2*q)}, {vr(2*q+1)}')
    a(f'v_bfe_u32 {vr(vt+2)}, {vr(vTid)}, 7, 1')
    a(f'v_lshl_add_u32 {vr(vt+1)}, {vr(vt+2)}, 5, {vr(vt+1)}')
    a(f'v_lshlrev_b32 {vr(vt+1)}, 10, {vr(vt+1)}')
    a(f'v_lshrrev_b32 {vr(vt+2)}, 8, {vr(vTid)}')
    a(f'v_lshl_add_u32 {vr(vt+1)}, {vr(vt+2)}, 6, {vr(vt+1)}')
    a(f'v_bfe_u32 {vr(vt+2)}, {vr(vTid)}, 5, 2')
    a(f'v_lshl_add_u32 {vr(vt+1)}, {vr(vt+2)}, 4, {vr(vt+1)}')
    a(f's_lshl_b32 {sr(st0)}, {sr(sRt)}, 16')
    a(f's_lshl_b32 {sr(st1)}, {sr(sCt)}, 7')
    a(f's_add_u32 {sr(st0)}, {sr(st0)}, {sr(st1)}')
    a(f'buffer_store_dwordx4 {vr(0,4)}, {vr(vt+1)}, {sr(sO,4)}, {sr(st0)} offen')
    a('s_waitcnt vmcnt(0)')
    stamp(a,4)
    stamp_flush(a,2,5,sWS,sWave)
    a.label('k3_end')
    a('s_endpgm')
    kernel_desc(a, name, 200)
    return name
```

```python
import sys
sys.path.insert(0,'dev')
from asmlib import *
import importlib, f_a, k3
HDR = open('gated_mix__linear_kernel_hedgehog__compressed_kv_cla__prompt.s.ref').read().split('; Override launch')[0]
def build():
    a = Asm()
    a.raw(HDR.rstrip('\n'))
    a.raw('; @launch kernel=f_kernel grid=(256,1,1) block=(512,1,1) lds=157696')
    a.raw('; @launch kernel=k3_kernel grid=(256,1,1) block=(512,1,1) lds=131072')
    a.raw('.amdgcn_target "amdgcn-amd-amdhsa--gfx950"')
    f_a.gen_f(a); k3.gen_k3(a)
    return a.text()
if __name__ == '__main__':
    t = build()
    dst = sys.argv[1] if len(sys.argv)>1 else 'gated_mix__linear_kernel_hedgehog__compressed_kv_cla__prompt.s'
    open(dst,'w').write(t)
    print(len(t), 'bytes', t.count('\n'), 'lines')
```

```python
import os
STAMP = os.environ.get('STAMP','0')=='1'
class Asm:
    def __init__(self):
        self.lines = []
        self.uid = 0
    def __call__(self, s):
        for ln in s.split('\n'):
            self.lines.append('    ' + ln.strip())
    def label(self, name):
        self.lines.append(name + ':')
    def raw(self, s):
        self.lines.append(s)
    def newlabel(self, p='L'):
        self.uid += 1
        return f'{p}_{self.uid}'
    def text(self):
        return '\n'.join(self.lines) + '\n'

def vr(i, n=1):
    return f'v{i}' if n == 1 else f'v[{i}:{i+n-1}]'
def sr(i, n=1):
    return f's{i}' if n == 1 else f's[{i}:{i+n-1}]'

def mfma(a, d, A, B, C=None):
    if C is None: c = vr(d, 16)
    elif C == 'zero': c = '0'
    else: c = vr(C, 16)
    a(f'v_mfma_f32_32x32x16_bf16 {vr(d,16)}, {vr(A,4)}, {vr(B,4)}, {c}')

def make_srd(a, s, off, nbytes):
    a(f's_load_dwordx2 {sr(s,2)}, s[0:1], {off}')
def fin_srd(a, s, nbytes):
    a(f's_and_b32 {sr(s+1)}, {sr(s+1)}, 0xffff')
    a(f's_mov_b32 {sr(s+2)}, {nbytes}')
    a(f's_mov_b32 {sr(s+3)}, 0x00020000')

def kernel_header(a, name):
    a.raw('.text')
    a.raw(f'.globl {name}')
    a.raw('.p2align 8')
    a.raw(f'.type {name},@function')
    a.label(name)

def kernel_desc(a, name, nvgpr, nsgpr=102):
    if STAMP: nvgpr = max(nvgpr, 254)
    acc = (nvgpr + 3) // 4 * 4
    a.raw('.section .rodata,"a"')
    a.raw('.p2align 6')
    a.raw(f'.amdhsa_kernel {name}')
    a.raw(f'  .amdhsa_next_free_vgpr {nvgpr}')
    a.raw(f'  .amdhsa_next_free_sgpr {nsgpr}')
    a.raw(f'  .amdhsa_accum_offset {acc}')
    a.raw('  .amdhsa_group_segment_fixed_size 0')
    a.raw('  .amdhsa_kernarg_size 112')
    a.raw('  .amdhsa_user_sgpr_count 2')
    a.raw('  .amdhsa_user_sgpr_kernarg_segment_ptr 1')
    a.raw('  .amdhsa_system_sgpr_workgroup_id_x 1')
    a.raw('.end_amdhsa_kernel')

WS_KV   = 0
WS_Q    = 32 << 20
WS_CTX  = 48 << 20
WS_WT   = 68 << 20
WS_PHIQ = 74 << 20
WS_KVP  = 78 << 20
WS_G    = 80 << 20
WS_BYTES = 256 << 20

import os
STAMP = os.environ.get('STAMP','0')=='1'
WS_STAMP = 100<<20
STG = os.environ.get('STG','')
def stamp(a, i, force=False):
    if not STAMP: return
    if STG and not force and i >= 1: return
    a('s_memtime s[78:79]')
    a('s_waitcnt lgkmcnt(0)')
    a(f's_mov_b32 s{80+i}, s78')
def rstamp(a, reg):
    if not STAMP: return
    a('s_memrealtime s[78:79]')
    a('s_waitcnt lgkmcnt(0)')
    a(f's_mov_b32 s{reg}, s78')
def stamp_flush(a, kidx, n, sWS, sWave):
    if not STAMP: return
    a(f's_lshl_b32 s76, s2, 3')
    a(f's_add_u32 s76, s76, {sr(sWave)}')
    a(f's_lshl_b32 s76, s76, 6')
    a(f's_add_u32 s76, s76, {WS_STAMP + kidx*(1<<20)}')
    a('v_mov_b32 v252, 0')
    for i in range(n):
        a(f'v_mov_b32 v253, s{80+i}')
        a(f'buffer_store_dword v253, v252, {sr(sWS,4)}, s76 offen offset:{4*i}')
    for i in range(2):
        a(f'v_mov_b32 v253, s{100+i}')
        a(f'buffer_store_dword v253, v252, {sr(sWS,4)}, s76 offen offset:{4*(12+i)}')
    a('s_waitcnt vmcnt(0)')
```

```python
from asmlib import *
import struct, os
QSCALE = 0.127517432
def f2u(x): return struct.unpack('<I', struct.pack('<f', x))[0]
EXP = os.environ.get('EXP', '')
STM = {'a':' nt','b':' sc1','c':' sc0 sc1','d':' sc0 sc1 nt','e':' sc0','p':'','f':' sc1 nt'}.get(os.environ.get('STM','b'),'')

class Trk:
    def __init__(self, a, name): self.a, self.name, self.out = a, name, []
    def issue(self, tag): self.out.append(tag)
    def need(self, tags):
        idx = max([i for i, x in enumerate(self.out) if x in tags], default=-1)
        if idx < 0: return
        n = len(self.out) - 1 - idx
        self.a(f's_waitcnt {self.name}({n})')
        del self.out[:idx+1]
    def drain(self):
        if self.out: self.a(f's_waitcnt {self.name}(0)')
        self.out = []

def gen_f(a):
    name = 'f_kernel'
    kernel_header(a, name)
    sX1, sX2, sW1, sWq, sWA, sWS = 8, 12, 16, 20, 24, 28
    sT = 32
    sWave, sH, sRt = 36, 37, 38
    sXb, sW1b, sWqb, sWAb = 40, 41, 42, 43
    sM, sM2, sM1, sRb = 44, 45, 46, 47
    sTile, sXb2 = 39, 3
    st0, st1, st2, st3 = 48, 49, 50, 51
    sO = 72
    ACC = 0; FR = 128
    vXa = 184; vWa = 192
    vXE, vXO, vW, vA = 196, 197, 198, 199
    vLane, vL16, vG, vTid = 200, 201, 202, 203
    vGF = 204; vGA = 212; hh, nn = 213, 214
    vt = 215
    BIG = 218
    lg = Trk(a, 'lgkmcnt'); vm = Trk(a, 'vmcnt')
    a('s_cmp_ge_u32 s2, 256')
    a('s_cbranch_scc1 f_end')
    make_srd(a, sX1, 40, 0); make_srd(a, sW1, 56, 0)
    a('s_load_dwordx2 s[54:55], s[0:1], 64')
    make_srd(a, sWS, 104, 0)
    make_srd(a, 4, 96, 0)
    make_srd(a, sX2, 0, 0); make_srd(a, sWq, 48, 0); make_srd(a, sWA, 8, 0)
    a('s_load_dwordx2 s[56:57], s[0:1], 72')
    a('s_load_dwordx2 s[58:59], s[0:1], 24')
    a('s_load_dwordx2 s[60:61], s[0:1], 80')
    a('s_load_dwordx2 s[62:63], s[0:1], 16')
    stamp(a, 0)
    rstamp(a, 100)
    a(f'v_lshrrev_b32 v1, 6, v0')
    a(f'v_mov_b32 {vr(vTid)}, v0')
    a(f'v_and_b32 {vr(vLane)}, 63, v0')
    a(f'v_readfirstlane_b32 {sr(sWave)}, v1')
    a(f's_and_b32 {sr(st0)}, s2, 7')
    a(f's_lshr_b32 {sr(st1)}, s2, 3')
    a(f's_lshr_b32 {sr(st2)}, {sr(st1)}, 3')
    a(f's_lshl_b32 {sr(sH)}, {sr(st0)}, 2')
    a(f's_add_u32 {sr(sH)}, {sr(sH)}, {sr(st2)}')
    a(f's_and_b32 {sr(sRt)}, {sr(st1)}, 7')
    if 'same' in EXP:
        a(f's_lshl_b32 {sr(sH)}, {sr(st0)}, 2'); a(f's_mov_b32 {sr(sRt)}, 0')
    if 'nomap' in EXP:
        a(f's_lshr_b32 {sr(sH)}, s2, 3'); a(f's_and_b32 {sr(sRt)}, s2, 7')
    if 'allsame' in EXP:
        a(f's_mov_b32 {sr(sH)}, 0'); a(f's_mov_b32 {sr(sRt)}, 0')
    a(f's_lshl_b32 {sr(sM)}, {sr(sWave)}, 12')
    a(f's_lshl_b32 {sr(sM2)}, {sr(sWave)}, 11')
    a(f's_lshl_b32 {sr(sM1)}, {sr(sWave)}, 10')
    a(f's_sub_u32 {sr(st0)}, 15, {sr(sRt)}')
    a(f's_cmp_lt_u32 {sr(sWave)}, 4')
    a(f's_cselect_b32 {sr(sTile)}, {sr(st0)}, {sr(sRt)}')
    a(f's_lshl_b32 {sr(sRb)}, {sr(sTile)}, 2')
    a(f's_and_b32 {sr(st0)}, {sr(sWave)}, 3')
    a(f's_add_u32 {sr(sRb)}, {sr(sRb)}, {sr(st0)}')
    a(f's_lshl_b32 {sr(sXb2)}, {sr(sRb)}, 15')
    l = vr(vLane)
    t = [vr(FR+i) for i in range(8)]
    a(f'v_lshrrev_b32 {t[0]}, 3, {l}')
    a(f'v_and_b32 {t[1]}, 7, {l}')
    a(f'v_lshrrev_b32 {t[2]}, 4, {l}')
    a(f'v_xor_b32 {t[3]}, {t[1]}, {t[2]}')
    a(f'v_lshlrev_b32 {t[3]}, 4, {t[3]}')
    a(f'v_lshl_add_u32 {vr(vXE)}, {t[0]}, 10, {t[3]}')
    a(f'v_xor_b32 {vr(vXO)}, 64, {vr(vXE)}')
    a(f'v_and_b32 {t[2]}, 1, {t[2]}')
    a(f'v_lshlrev_b32 {t[2]}, 2, {t[2]}')
    a(f'v_xor_b32 {t[1]}, {t[1]}, {t[2]}')
    a(f'v_lshlrev_b32 {t[3]}, 4, {t[1]}')
    a(f'v_lshl_add_u32 {vr(vW)}, {t[0]}, 13, {t[3]}')
    a(f'v_mul_u32_u24 {vr(vA)}, 3072, {t[0]}')
    a(f'v_lshrrev_b32 {t[2]}, 1, {t[1]}')
    a(f'v_lshl_add_u32 {vr(vA)}, {t[2]}, 10, {vr(vA)}')
    a(f'v_and_b32 {t[2]}, 1, {t[1]}')
    a(f'v_lshl_add_u32 {vr(vA)}, {t[2]}, 4, {vr(vA)}')
    a(f'v_mov_b32 {t[3]}, 0x40000000')
    a(f'v_cmp_lt_u32 vcc, 5, {t[1]}')
    a(f'v_lshlrev_b32 {vr(vL16)}, 4, {l}')
    a(f'v_lshrrev_b32 {vr(hh)}, 5, {l}')
    a(f'v_cndmask_b32 {vr(vA)}, {vr(vA)}, {t[3]}, vcc')
    a(f'v_and_b32 {vr(nn)}, 31, {l}')
    a(f's_lshl_b32 {sr(sXb)}, {sr(sRt)}, 18')
    a(f's_lshl_b32 {sr(st0)}, {sr(sWave)}, 15')
    a(f's_add_u32 {sr(sXb)}, {sr(sXb)}, {sr(st0)}')
    a(f's_and_b32 {sr(st0)}, {sr(sWave)}, 1')
    a(f's_lshl_b32 {sr(sW1b)}, {sr(st0)}, 18')
    a(f's_lshl_b32 {sr(st1)}, {sr(sH)}, 8')
    a(f's_add_u32 {sr(sW1b)}, {sr(sW1b)}, {sr(st1)}')
    a(f's_bfe_u32 {sr(st0)}, {sr(sWave)}, 0x10001')
    a(f's_lshl_b32 {sr(st0)}, {sr(st0)}, 7')
    a(f's_add_u32 {sr(sW1b)}, {sr(sW1b)}, {sr(st0)}')
    a(f's_and_b32 {sr(st0)}, {sr(sWave)}, 3')
    a(f's_lshl_b32 {sr(sWqb)}, {sr(st0)}, 17')
    a(f's_add_u32 {sr(sWqb)}, {sr(sWqb)}, {sr(st1)}')
    a(f's_lshr_b32 {sr(st0)}, {sr(sWave)}, 2')
    a(f's_lshl_b32 {sr(st0)}, {sr(st0)}, 7')
    a(f's_add_u32 {sr(sWqb)}, {sr(sWqb)}, {sr(st0)}')
    a(f's_mul_i32 {sr(sWAb)}, {sr(sWave)}, {8*3072}')
    a(f's_lshl_b32 {sr(st0)}, {sr(sH)}, 5')
    a(f's_add_u32 {sr(sWAb)}, {sr(sWAb)}, {sr(st0)}')
    a('s_waitcnt lgkmcnt(0)')
    fin_srd(a, sX1, 2048*1024)
    a(f's_cmp_lt_u32 {sr(sWave)}, 4')
    a(f's_cselect_b32 {sr(sW1)}, {sr(sW1)}, s54')
    a(f's_cselect_b32 {sr(sW1+1)}, {sr(sW1+1)}, s55')
    fin_srd(a, sW1, 512*8192)

    def dma_items(s):
        buf = (s & 1) * 65536; p2 = s >= 8; st = s & 7
        X = sX2 if p2 else sX1
        it = []
        for j in range(4):
            it.append([f's_add_u32 m0, {sr(sM)}, {buf + j*1024}', f's_add_u32 {sr(st0)}, {sr(sXb2 if p2 else sXb)}, {st*128 + j*8192}',
                       f'buffer_load_dwordx4 {vr(vXE if j%2==0 else vXO)}, {sr(X,4)}, {sr(st0)} offen lds'])
        if not p2:
            for j in range(4):
                it.append([f's_add_u32 m0, {sr(sM)}, {buf+32768+j*1024}', f's_add_u32 {sr(st0)}, {sr(sW1b)}, {st*64*8192 + j*8*8192}',
                           f'buffer_load_dwordx4 {vr(vW)}, {sr(sW1,4)}, {sr(st0)} offen lds'])
        else:
            for j in range(2):
                it.append([f's_add_u32 m0, {sr(sM2)}, {buf+32768+j*1024}', f's_add_u32 {sr(st0)}, {sr(sWqb)}, {st*64*8192 + j*8*8192}',
                           f'buffer_load_dwordx4 {vr(vW)}, {sr(sWq,4)}, {sr(st0)} offen lds'])
            it.append([f's_add_u32 m0, {sr(sM1)}, {buf+32768+16384}', f's_add_u32 {sr(st0)}, {sr(sWAb)}, {st*64*3072}',
                       f'buffer_load_dwordx4 {vr(vA)}, {sr(sWA,4)}, {sr(st0)} offen lds'])
        if 'nodma' in EXP and s >= 2: it = []
        return [(x, f'dma{s}') for x in it]
    def emit_vm(item):
        ins, tag = item
        for x in ins: a(x)
        vm.issue(tag)
    for it in dma_items(0): emit_vm(it)
    fin_srd(a, sX2, 2048*1024); fin_srd(a, sWq, 512*8192); fin_srd(a, sWA, 512*3072); fin_srd(a, sWS, WS_BYTES); fin_srd(a, 4, 256)
    a(f's_mov_b32 {sr(sT)}, s60'); a(f's_mov_b32 {sr(sT+1)}, s61'); fin_srd(a, sT, 1024)
    emit_vm((['s_mov_b32 m0, 131072', 's_nop 0', f'buffer_load_dwordx4 {vr(vL16)}, {sr(sT,4)}, 0 offen lds'], 'dma0'))
    LDS_WP = 156672
    a(f's_mov_b32 {sr(sT)}, s62'); a(f's_mov_b32 {sr(sT+1)}, s63'); fin_srd(a, sT, 32*512)
    a(f's_lshl_b32 {sr(st3)}, {sr(sH)}, 9')
    emit_vm(([f's_mov_b32 m0, {LDS_WP}', 's_nop 0', f'buffer_load_dwordx4 {vr(vL16)}, {sr(sT,4)}, {sr(st3)} offen lds'], 'dma0'))
    for it in dma_items(1): emit_vm(it)

    vPX, vPW, vPQ_, vPA_, vPD = 250, 251, 215, 216, 252
    a(f's_lshr_b32 s64, s2, 3')
    a(f's_lshl_b32 s65, s64, 16')
    a(f's_lshl_b32 s66, {sr(sWave)}, 7')
    a(f's_add_u32 s95, s65, s66')
    a(f'v_lshlrev_b32 {vr(vPX)}, 10, {l}')
    a(f's_and_b32 s65, {sr(sWave)}, 3')
    a(f's_lshl_b32 s66, s64, 2')
    a(f's_add_u32 s65, s65, s66')
    a(f's_lshl_b32 s65, s65, 15')
    a(f's_and_b32 s66, s2, 7')
    a(f's_lshl_b32 s66, s66, 10')
    a(f's_add_u32 s96, s65, s66')
    a(f'v_lshrrev_b32 {t[0]}, 3, {l}')
    a(f'v_and_b32 {t[1]}, 7, {l}')
    a(f'v_lshlrev_b32 {vr(vPW)}, 13, {t[0]}')
    a(f'v_lshl_add_u32 {vr(vPW)}, {t[1]}, 7, {vr(vPW)}')
    a(f'v_mov_b32 {t[2]}, 0x40000000')
    a(f'v_cmp_lt_u32 s[68:69], 15, {l}')
    a(f'v_cmp_lt_u32 vcc, 31, {l}')
    a('s_nop 0')
    a(f'v_cndmask_b32 {vr(vPQ_)}, {vr(vPW)}, {t[2]}, s[68:69]')
    a(f'v_cndmask_b32 {vr(vPW)}, {vr(vPW)}, {t[2]}, vcc')
    a(f's_lshl_b32 s65, s64, 3')
    a(f's_add_u32 s65, s65, {sr(sWave)}')
    a(f's_lshl_b32 s97, s65, 14')
    a(f's_add_u32 s97, s97, s66')
    a(f'v_lshrrev_b32 {t[0]}, 2, {l}')
    a(f'v_mul_u32_u24 {t[0]}, 3072, {t[0]}')
    a(f'v_and_b32 {t[1]}, 3, {l}')
    a(f'v_lshl_add_u32 {vr(vPA_)}, {t[1]}, 10, {t[0]}')
    a(f'v_cmp_eq_u32 s[68:69], 3, {t[1]}')
    a(f'v_cmp_lt_u32 vcc, 7, {l}')
    a(f's_mul_i32 s98, s65, {2*3072}')
    a(f's_lshr_b32 s66, s66, 3')
    a(f's_add_u32 s98, s98, s66')
    a(f'v_cndmask_b32 {vr(vPA_)}, {vr(vPA_)}, {t[2]}, s[68:69]')
    a(f'v_cndmask_b32 {vr(vPA_)}, {vr(vPA_)}, {t[2]}, vcc')
    pf1 = [('vm', ([f'buffer_load_dword {vr(vPD)}, {vr(vPX)}, {sr(sX1,4)}, s95 offen'], 'pf')),
           ('vm', ([f'buffer_load_dword {vr(vPD)}, {vr(vPW)}, {sr(sW1,4)}, s96 offen'], 'pf'))]
    pf2 = [('vm', ([f'buffer_load_dword {vr(vPD)}, {vr(vPX)}, {sr(sX2,4)}, s95 offen'], 'pf')),
           ('vm', ([f'buffer_load_dword {vr(vPD)}, {vr(vPQ_)}, {sr(sWq,4)}, s97 offen'], 'pf')),
           ('vm', ([f'buffer_load_dword {vr(vPD)}, {vr(vPA_)}, {sr(sWA,4)}, s98 offen'], 'pf'))]
    if 'nopf' in EXP: pf1, pf2 = [], []
    PF = os.environ.get('PF', '0x')
    if PF[0] == 's':
        for k_, it in pf1: emit_vm(it)
    stamp(a, 1)
    a(f'v_lshrrev_b32 {t[0]}, 1, {vr(nn)}')
    a(f'v_and_b32 {t[0]}, 7, {t[0]}')
    a(f'v_xor_b32 {t[0]}, {t[0]}, {vr(hh)}')
    a(f'v_lshlrev_b32 {t[0]}, 4, {t[0]}')
    a(f'v_lshl_add_u32 {t[6]}, {vr(nn)}, 7, {t[0]}')
    a(f'v_bfe_u32 {t[1]}, {l}, 2, 2')
    a(f'v_lshl_add_u32 {t[2]}, {vr(hh)}, 3, {t[1]}')
    a(f'v_lshlrev_b32 {t[2]}, 7, {t[2]}')
    a(f'v_bfe_u32 {t[3]}, {l}, 4, 1')
    a(f'v_lshlrev_b32 {t[3]}, 5, {t[3]}')
    a(f'v_and_b32 {t[4]}, 3, {l}')
    a(f'v_lshl_add_u32 {t[3]}, {t[4]}, 3, {t[3]}')
    a(f'v_lshrrev_b32 {t[4]}, 1, {t[1]}')
    a(f'v_lshlrev_b32 {t[4]}, 6, {t[4]}')
    a(f'v_xor_b32 {t[3]}, {t[3]}, {t[4]}')
    a(f'v_add_u32 {t[7]}, {t[2]}, {t[3]}')
    sXP1, sWP1 = 52, 53
    a(f's_bfe_u32 {sr(sXP1)}, {sr(sWave)}, 0x10001')
    a(f's_lshl_b32 {sr(sXP1)}, {sr(sXP1)}, 14')
    a(f's_lshr_b32 {sr(st1)}, {sr(sWave)}, 2')
    a(f's_lshl_b32 {sr(st1)}, {sr(st1)}, 1')
    a(f's_and_b32 {sr(st2)}, {sr(sWave)}, 1')
    a(f's_add_u32 {sr(st1)}, {sr(st1)}, {sr(st2)}')
    a(f's_lshl_b32 {sr(st1)}, {sr(st1)}, 13')
    a(f's_add_u32 {sr(sWP1)}, {sr(st1)}, 32768')
    for b in range(2):
        for ks in range(4):
            a(f'v_xor_b32 {vr(vXa+4*b+ks)}, {32*ks}, {t[6]}')
            a(f'v_add_u32 {vr(vXa+4*b+ks)}, {sr(sXP1)}, {vr(vXa+4*b+ks)}')
            if b: a(f'v_add_u32 {vr(vXa+4*b+ks)}, 0x10000, {vr(vXa+4*b+ks)}')
        for cb in range(2):
            a(f'v_xor_b32 {vr(vWa+2*b+cb)}, {64*cb}, {t[7]}')
            a(f'v_add_u32 {vr(vWa+2*b+cb)}, {sr(sWP1)}, {vr(vWa+2*b+cb)}')
            if b: a(f'v_add_u32 {vr(vWa+2*b+cb)}, 0x10000, {vr(vWa+2*b+cb)}')
    a(f'v_lshlrev_b32 {vr(vG)}, 4, {vr(hh)}')
    a(f'v_add_u32 {vr(vG)}, 131072, {vr(vG)}')
    a(f'v_mov_b32 {vr(vGA)}, 0')
    a(f's_lshl_b32 {sr(st0)}, {sr(sH)}, 20')
    a(f's_lshl_b32 {sr(st1)}, {sr(sRt)}, 17')
    a(f's_add_u32 {sr(st0)}, {sr(st0)}, {sr(st1)}')
    a(f's_bfe_u32 {sr(st1)}, {sr(sWave)}, 0x10001')
    a(f's_lshl_b32 {sr(st1)}, {sr(st1)}, 16')
    a(f's_add_u32 {sr(st0)}, {sr(st0)}, {sr(st1)}')
    a(f's_and_b32 {sr(st1)}, {sr(sWave)}, 1')
    a(f's_cmp_lt_u32 {sr(sWave)}, 4')
    a(f's_cselect_b32 {sr(st2)}, 12, 11')
    a(f's_lshl_b32 {sr(st1)}, {sr(st1)}, {sr(st2)}')
    a(f's_add_u32 {sr(st0)}, {sr(st0)}, {sr(st1)}')
    a(f's_cselect_b32 {sr(st1)}, 0, 16384')
    a(f's_cmp_lt_u32 {sr(sWave)}, 4')
    a(f's_cselect_b32 {sr(st1)}, 0, 16384')
    a(f's_add_u32 {sr(sO)}, {sr(st0)}, {sr(st1)}')
    a(f's_cmp_lt_u32 {sr(sWave)}, 4')
    a(f's_cselect_b32 {sr(st1)}, 1, 4')
    a(f's_cselect_b32 {sr(st2)}, 2, 1')
    a(f's_lshl_b32 {sr(st1)}, {sr(st1)}, 10')
    a(f's_lshl_b32 {sr(st2)}, {sr(st2)}, 10')
    a(f's_add_u32 {sr(sO+1)}, {sr(sO)}, {sr(st1)}')
    a(f's_add_u32 {sr(sO+2)}, {sr(sO)}, {sr(st2)}')
    a(f's_add_u32 {sr(sO+3)}, {sr(sO+2)}, {sr(st1)}')

    def p1_reads(s, ks, fs):
        b = s & 1; f = FR + 28*fs; out = []
        def W(cb): return [(f'ds_read_b64_tr_b16 {vr(f+16+4*cb+2*h2,2)}, {vr(vWa+2*b+cb)} offset:{ks*2048+h2*512}', f'W{cb}_{fs}') for h2 in range(2)]
        def X(rb): return [(f'ds_read_b128 {vr(f+4*rb,4)}, {vr(vXa+4*b+ks)} offset:{rb*4096}', f'X{rb}_{fs}')]
        return W(0) + X(0) + W(1) + X(1) + X(2) + X(3)
    def p2_reads(s, ks, fs):
        b = s & 1; f = FR + 28*fs
        out = [(f'ds_read_b128 {vr(f,4)}, {vr(vXa+4*b+ks)}', f'X_{fs}')]
        for blk in range(6):
            grp, cb = blk >> 1, blk & 1
            for h2 in range(2):
                out.append((f'ds_read_b64_tr_b16 {vr(f+4+4*blk+2*h2,2)}, {vr(vWa+2*b+cb)} offset:{grp*8192+ks*2048+h2*512}', f'W{blk}_{fs}'))
            if blk == 1 and 'nodot' not in EXP: out.append((f'ds_read_b128 {vr(vGF+4*fs,4)}, {vr(vG)} offset:{(s&7)*128+ks*32}', f'G_{fs}'))
        if 'fewrd' in EXP: out = [o for o in out if o[1][:2] not in ('W2','W3','W4')]
        if 'b128' in EXP:
            o2 = []
            for o in out:
                if 'tr_b16' in o[0]:
                    if o2 and o2[-1][1] == o[1] and o2[-1][2]: o2.pop();
                    else:
                        import re
                        m = re.match(r'ds_read_b64_tr_b16 v\[(\d+):\d+\], (v\d+) offset:(\d+)', o[0])
                        o2.append((f'ds_read_b128 v[{m.group(1)}:{int(m.group(1))+3}], {vr(vXa+4*b+ks)} offset:{m.group(3)}', o[1], True)); o2.append(o2[-1]);
                        o2.pop()
                        continue
                else: o2.append((o[0], o[1], False))
            seen=set(); out=[]
            for o in o2:
                k=(o[1])
                if k in seen: continue
                seen.add(k); out.append((o[0],o[1]))
        return out
    def emit_rd(r): a(r[0]); lg.issue(r[1])
    def M(d, A, B, c0):
        return f'v_mfma_f32_32x32x16_bf16 {vr(d,16)}, {vr(A,4)}, {vr(B,4)}, {"0" if c0 else vr(d,16)}'

    carry = {}
    sp = os.environ.get('SP', '8080')
    SPREAD = {1: (int(sp[0]), int(sp[1])), 2: (int(sp[2]), int(sp[3]))}
    def phase(p, kwave, side):
        s0 = 0 if p == 1 else 8
        for s in range(s0, s0+8):
            for ks in range(4):
                fs = ks & 1; f = FR + 28*fs
                first = (s == s0 and ks == 0); last = (ks == 3)
                q = [('vm', it) for it in carry.pop((s, ks), [])] + list(side.get((s, ks), []))
                if last:
                    lg.drain()
                    if s + 1 < 16:
                        vm.need({f'dma{s+1}'})
                        a('s_barrier')
                    if STG == str(p): stamp(a, 2 + (s & 7), True)
                    if s + 2 < 16:
                        di = dma_items(s+2)
                        n0, n1 = SPREAD[p]
                        if s + 1 == 8 and p == 1: n0 = len(di)
                        q = [('vm', it) for it in di[:n0]] + q
                        carry[(s+1, 0)] = di[n0:n0+n1]; carry[(s+1, 1)] = di[n0+n1:]
                    ns, nks = s+1, 0
                else:
                    ns, nks = s, ks+1
                if ns >= 16 or (p == 1 and ns == 8): rd = []
                else: rd = (p1_reads if p == 1 else p2_reads)(ns, nks, 1-fs)
                mf = []
                if p == 1:
                    for rb in range(4):
                        for cb in range(2):
                            d = ACC + 16*(2*rb+cb); X = f+4*rb; W = f+16+4*cb
                            mf.append((M(d, W, X, first) if kwave else M(d, X, W, first), {f'X{rb}_{fs}', f'W{cb}_{fs}'}))
                    rper = 2
                else:
                    X = f
                    for blk in range(5): mf.append((M(ACC+16*blk, f+4+4*blk, X, first), {f'X_{fs}', f'W{blk}_{fs}'}))
                    mf.append((M(ACC+80, X, f+24, first), {f'X_{fs}', f'W5_{fs}'}))
                    rper = 3
                n = len(mf)
                qper = -(-len(q)//n) if q else 0
                for i, (m, need) in enumerate(mf):
                    lg.need(need)
                    a(m)
                    for r in rd[i*rper:(i+1)*rper]: emit_rd(r)
                    for kind, it in q[i*qper:(i+1)*qper]:
                        if kind == 'vm': emit_vm(it)
                        elif kind == 'vmneed': vm.need(it)
                        elif kind == 'lg': emit_rd(it)
                        elif kind == 'lgneed': lg.need(it)
                        else: a(it)
                    if p == 2 and 2 <= i < 6 and 'nodot' not in EXP:
                        if i == 2: lg.need({f'G_{fs}'})
                        a(f'v_dot2c_f32_bf16 {vr(vGA)}, {vr(X+i-2)}, {vr(vGF+4*fs+i-2)}')

    vm.need({'dma0'})
    a('s_barrier')
    stamp(a, 2)
    if STG == '1': stamp(a, 1, True)
    for r in p1_reads(0, 0, 0): emit_rd(r)
    side1 = {}
    if PF[0] in '0123': side1[(int(PF[0]), 0)] = pf1
    if PF[1] == 'x':
        side1[(3, 0)] = pf2[0:1]; side1[(4, 0)] = pf2[1:2]; side1[(5, 0)] = pf2[2:3]
    elif PF[1] == 'y':
        side1[(4, 0)] = pf2[0:1]; side1[(5, 0)] = pf2[1:2]; side1[(6, 0)] = pf2[2:3]
    elif PF[1] in '01234567': side1[(int(PF[1]), 0)] = side1.get((int(PF[1]), 0), []) + pf2
    a(f's_cmp_lt_u32 {sr(sWave)}, 4')
    a('s_cbranch_scc0 f_vwave')
    sv_lg, sv_vm = list(lg.out), list(vm.out)
    phase(1, True, side1)
    a('s_branch f_p2')
    a.label('f_vwave')
    e_lg, e_vm = list(lg.out), list(vm.out)
    lg.out, vm.out = list(sv_lg), list(sv_vm)
    phase(1, False, side1)
    assert lg.out == e_lg and vm.out == e_vm
    a.label('f_p2')
    stamp(a, 3)
    a(f's_sub_u32 {sr(st0)}, {sr(sM)}, {sr(sXP1)}')
    a(f's_sub_u32 {sr(st1)}, 32768, {sr(sWP1)}')
    for i in range(8): a(f'v_add_u32 {vr(vXa+i)}, {sr(st0)}, {vr(vXa+i)}')
    for i in range(4): a(f'v_add_u32 {vr(vWa+i)}, {sr(st1)}, {vr(vWa+i)}')
    for r in p2_reads(8, 0, 0): emit_rd(r)
    a('s_nop 3')
    dst = {6: BIG, 7: BIG+8, 0: BIG+16, 1: BIG+24, 2: 96, 3: 104, 4: 112, 5: 120}
    for blk in (6, 7, 0, 1, 2, 3, 4, 5):
        for q_ in range(8):
            a(f'v_cvt_pk_bf16_f32 {vr(dst[blk]+q_)}, {vr(ACC+16*blk+2*q_)}, {vr(ACC+16*blk+2*q_+1)}')
    stamp(a, 4)
    if STG == '2': stamp(a, 1, True)
    side2 = {}
    stores = []
    for blk in (2, 3, 4, 5, 6, 7, 0, 1):
        rb, cb = blk >> 1, blk & 1
        for g in range(2):
            if 'nost' not in EXP: stores.append(('vm', ([f's_add_u32 {sr(st1)}, {sr(sO+2*cb+g)}, {(rb>>1)*32768 + (rb&1)*8192}',
                                   f'buffer_store_dwordx4 {vr(dst[blk]+4*g,4)}, {vr(vL16)}, {sr(sWS,4)}, {sr(st1)} offen{STM}'], 'p1st')))
    sched = {8: 3, 9: 3, 10: 2, 11: 2, 12: 2, 13: 2, 14: 2}
    k_ = 0
    for st_, cnt in sched.items():
        lst = stores[k_:k_+cnt]; k_ += cnt
        side2[(st_, 0)] = lst[:(cnt+1)//2]; side2[(st_, 1)] = lst[(cnt+1)//2:]
    ID = 104
    c0, c1 = 217, 252
    idq = [('v', f'v_lshlrev_b32 {vr(vt+1)}, 2, {vr(hh)}'), ('v', f'v_sub_u32 {vr(vt+1)}, {vr(nn)}, {vr(vt+1)}'),
           ('v', f'v_mov_b32 {vr(c0)}, 0x3f80'), ('v', f'v_mov_b32 {vr(c1)}, 0x3f800000')]
    for g in range(2):
        for q_ in range(4):
            k_lo = 16*g + 8*(q_ >> 1) + 2*(q_ & 1)
            idq += [('v', f'v_cmp_eq_u32 s[64:65], {k_lo}, {vr(vt+1)}'), ('v', f'v_cmp_eq_u32 s[66:67], {k_lo+1}, {vr(vt+1)}'),
                    ('v', f'v_mov_b32 {vr(ID+4*g+q_)}, 0'), ('v', 's_nop 0'),
                    ('v', f'v_cndmask_b32 {vr(ID+4*g+q_)}, {vr(ID+4*g+q_)}, {vr(c0)}, s[64:65]'),
                    ('v', f'v_cndmask_b32 {vr(ID+4*g+q_)}, {vr(ID+4*g+q_)}, {vr(c1)}, s[66:67]')]
    n = len(idq); per = -(-n//6)
    keys = [(11, 2), (12, 2), (13, 2), (14, 2), (15, 0), (15, 1)]
    for i, k in enumerate(keys): side2[k] = idq[i*per:(i+1)*per]
    phase(2, None, side2)
    stamp(a, 5)
    a('s_waitcnt vmcnt(0)')
    a('s_barrier')
    a(f's_lshl_b32 {sr(st0)}, {sr(sH)}, 3')
    a(f'v_mov_b32 v222, {sr(st0)}')
    a('v_mov_b32 v223, 1')
    a(f's_cmp_lg_u32 {sr(sWave)}, 0')
    a('s_cbranch_scc1 f_noat')
    a('s_mov_b64 s[64:65], exec')
    a('s_mov_b64 exec, 1')
    a('buffer_atomic_add v223, v222, s[4:7], 0 offen sc1')
    a('s_mov_b64 exec, s[64:65]')
    a.label('f_noat')
    QK = ACC+64; VA = ACC+80
    QF, KF, VF, WP = 112, 116, 120, BIG
    MT = 160; PQP = 242
    a(f'v_bfe_u32 {vr(vt)}, {l}, 2, 2')
    a(f'v_lshl_add_u32 {vr(vt)}, {vr(hh)}, 2, {vr(vt)}')
    a(f'v_lshlrev_b32 {vr(vt)}, 5, {vr(vt)}')
    a(f'v_and_b32 {vr(vt+1)}, 3, {l}')
    a(f'v_lshl_add_u32 {vr(vt)}, {vr(vt+1)}, 3, {vr(vt)}')
    a(f'v_add_u32 {vr(vt)}, {LDS_WP}, {vr(vt)}')
    a(f'ds_read_b64_tr_b16 {vr(WP,2)}, {vr(vt)}')
    a(f'ds_read_b64_tr_b16 {vr(WP+2,2)}, {vr(vt)} offset:256')
    a(f'v_cmp_lt_u32 vcc, 15, {vr(nn)}')
    a(f'v_mov_b32 {vr(vt)}, 0x80008000')
    a(f'v_mov_b32 {vr(vt+1)}, 0')
    a(f'v_cndmask_b32 {vr(vt)}, {vr(vt+1)}, {vr(vt)}, vcc')
    a('s_waitcnt lgkmcnt(0)')
    for q_ in range(4): a(f'v_xor_b32 {vr(WP+q_)}, {vr(WP+q_)}, {vr(vt)}')
    a('s_nop 3')
    for q_ in range(4):
        a(f'v_cvt_pk_bf16_f32 {vr(QF+q_)}, {vr(QK+2*q_)}, {vr(QK+2*q_+1)}')
        a(f'v_cvt_pk_bf16_f32 {vr(KF+q_)}, {vr(QK+8+2*q_)}, {vr(QK+8+2*q_+1)}')
    PQ, PK = BIG+8, QK
    a('s_nop 1')
    mfma(a, PQ, WP, QF, 'zero'); mfma(a, PK, WP, KF, 'zero')
    a(f's_mov_b32 s70, {hex(f2u(QSCALE))}'); a(f's_mov_b32 s71, {hex(f2u(QSCALE))}')
    for db in range(4):
        d = ACC+16*db
        for r in range(8): a(f'v_pk_mul_f32 {vr(d+2*r,2)}, {vr(d+2*r,2)}, s[70:71]')
        for g in range(2):
            for q_ in range(4):
                a(f'v_cvt_pk_bf16_f32 {vr(128+4*(2*db+g)+q_)}, {vr(d+8*g+2*q_)}, {vr(d+8*g+2*q_+1)}')
    stamp(a, 6)
    a(f'v_and_b32 {vr(vt)}, 27, {vr(nn)}')
    a(f'v_cmp_eq_u32 vcc, 16, {vr(vt)}')
    a(f'v_mov_b32 {vr(vt+1)}, 0x3f803f80')
    for q_ in range(8): a(f'v_cvt_pk_bf16_f32 {vr(VF+q_)}, {vr(VA+2*q_)}, {vr(VA+2*q_+1)}')
    for q_ in range(8): a(f'v_cndmask_b32 {vr(VF+q_)}, {vr(VF+q_)}, {vr(vt+1)}, vcc')
    L2E = 0x3fb8aa3b
    a(f's_mov_b32 s69, {hex(L2E)}')
    chains = [(PQ, MT), (PQ+8, MT+2), (PK, MT+4), (PK+8, MT+6)]
    gat = MT+8
    def each(fn):
        for b, m in chains: fn(b, m)
    each(lambda b, m: a(f'v_max3_f32 {vr(m)}, {vr(b)}, {vr(b+1)}, {vr(b+2)}'))
    each(lambda b, m: a(f'v_max3_f32 {vr(m)}, {vr(m)}, {vr(b+3)}, {vr(b+4)}'))
    each(lambda b, m: a(f'v_max3_f32 {vr(m)}, {vr(m)}, {vr(b+5)}, {vr(b+6)}'))
    each(lambda b, m: a(f'v_max_f32 {vr(m)}, {vr(m)}, {vr(b+7)}'))
    each(lambda b, m: a(f'v_mov_b32 {vr(m+1)}, {vr(m)}'))
    a(f'v_mov_b32 {vr(gat)}, {vr(vGA)}')
    a('s_nop 0')
    each(lambda b, m: a(f'v_permlane32_swap_b32 {vr(m)}, {vr(m+1)}'))
    a(f'v_permlane32_swap_b32 {vr(vGA)}, {vr(gat)}')
    a('s_nop 0')
    each(lambda b, m: a(f'v_max_f32 {vr(m)}, {vr(m)}, {vr(m+1)}'))
    a(f'v_add_f32 {vr(vGA)}, {vr(vGA)}, {vr(gat)}')
    each(lambda b, m: a(f'v_mul_f32 {vr(m)}, 0xbfb8aa3b, {vr(m)}'))
    a(f'v_mul_f32 {vr(vGA)}, 0xbfb8aa3b, {vr(vGA)}')
    for b, m in chains:
        for r in range(8): a(f'v_fma_f32 {vr(b+r)}, {vr(b+r)}, s69, {vr(m)}')
    a(f'v_exp_f32 {vr(vGA)}, {vr(vGA)}')
    for b, m in chains:
        for r in range(8): a(f'v_exp_f32 {vr(b+r)}, {vr(b+r)}')
    a(f'v_add_f32 {vr(vGA)}, 1.0, {vr(vGA)}')
    each(lambda b, m: a(f'v_add_f32 {vr(m)}, {vr(b)}, {vr(b+1)}'))
    for r in range(2, 8): each(lambda b, m: a(f'v_add_f32 {vr(m)}, {vr(m)}, {vr(b+r)}'))
    each(lambda b, m: a(f'v_mov_b32 {vr(m+1)}, {vr(m)}'))
    a(f'v_rcp_f32 {vr(vGA)}, {vr(vGA)}')
    a('s_nop 0')
    each(lambda b, m: a(f'v_permlane32_swap_b32 {vr(m)}, {vr(m+1)}'))
    a('s_nop 0')
    each(lambda b, m: a(f'v_add_f32 {vr(m)}, {vr(m)}, {vr(m+1)}'))
    each(lambda b, m: a(f'v_rcp_f32 {vr(m)}, {vr(m)}'))
    a('s_nop 0')
    for b, m in chains:
        for r in range(8): a(f'v_mul_f32 {vr(b+r)}, {vr(m)}, {vr(b+r)}')
    a(f's_cmp_lg_u32 {sr(sWave)}, 0')
    a('s_cbranch_scc1 f_nopoll')
    a('buffer_load_dword v224, v222, s[4:7], 0 offen sc1')
    a.label('f_nopoll')
    for g in range(2):
        for q_ in range(4):
            a(f'v_cvt_pk_bf16_f32 {vr(PK+8*g+q_)}, {vr(PK+8*g+2*q_)}, {vr(PK+8*g+2*q_+1)}')
    TT = ACC+0
    a('s_nop 0')
    mfma(a, TT, PK, ID, 'zero'); mfma(a, TT, PK+8, ID+4)
    for g in range(2):
        for q_ in range(4):
            a(f'v_cvt_pk_bf16_f32 {vr(PQP+4*g+q_)}, {vr(PQ+8*g+2*q_)}, {vr(PQ+8*g+2*q_+1)}')
    a('s_nop 7'); a('s_nop 3')
    for g in range(2):
        for q_ in range(4):
            a(f'v_cvt_pk_bf16_f32 {vr(TT+8*g+q_)}, {vr(TT+8*g+2*q_)}, {vr(TT+8*g+2*q_+1)}')
    KZ = ACC+16
    a('s_nop 1')
    mfma(a, KZ, TT, VF, 'zero'); mfma(a, KZ, TT+8, VF+4)
    a(f'v_add_u32 {vr(vt)}, {sr(sM)}, {vr(vL16)}')
    a(f'v_bfe_u32 {vr(MT)}, {vr(vTid)}, 1, 2')
    a(f'v_lshlrev_b32 {vr(MT)}, 10, {vr(MT)}')
    a(f'v_lshrrev_b32 {vr(MT+1)}, 3, {vr(vTid)}')
    a(f'v_lshl_add_u32 {vr(MT)}, {vr(MT+1)}, 4, {vr(MT)}')
    a(f'v_and_b32 {vr(MT+1)}, 1, {vr(vTid)}')
    a(f'v_lshl_add_u32 {vr(MT)}, {vr(MT+1)}, 3, {vr(MT)}')
    a(f's_lshl_b32 {sr(st0)}, {sr(sH)}, 15')
    a(f's_lshl_b32 {sr(st1)}, {sr(sRt)}, 12')
    a(f's_add_u32 {sr(st0)}, {sr(st0)}, {sr(st1)}')
    a(f's_add_u32 {sr(st0)}, {sr(st0)}, {WS_KVP}')
    a(f'v_lshlrev_b32 {vr(MT+2)}, 3, {vr(vTid)}')
    a('s_nop 7'); a('s_nop 1')
    for q_ in range(4):
        a(f'ds_write_b128 {vr(vt)}, {vr(KZ+4*q_,4)} offset:{q_*1024}')
    a(f'v_mov_b32 {vr(vt)}, 131072'); a(f'v_mov_b32 {vr(vt+1)}, 0')
    a(f'ds_write_b32 {vr(vt)}, {vr(vt+1)}')
    a(f's_cmp_lg_u32 {sr(sWave)}, 0')
    a('s_cbranch_scc1 f_sync_done')
    stamp(a, 1)
    a('s_mov_b32 s66, 40000')
    a.label('f_spin')
    a('s_waitcnt vmcnt(0)')
    a('v_readfirstlane_b32 s67, v224')
    a('s_cmp_ge_u32 s67, 8')
    a('s_cbranch_scc1 f_spin_out')
    a('buffer_load_dword v224, v222, s[4:7], 0 offen sc1')
    a('s_sub_u32 s66, s66, 1')
    a('s_cmp_lg_u32 s66, 0')
    a('s_cbranch_scc1 f_spin')
    a('s_waitcnt vmcnt(0)')
    a.label('f_spin_out')
    stamp(a, 4)
    a('buffer_inv sc1')
    a.label('f_sync_done')
    a('s_waitcnt lgkmcnt(0)')
    a('s_barrier')
    for wv in range(8):
        a(f'ds_read_b64 {vr(ACC+32+2*wv,2)}, {vr(MT)} offset:{wv*4096}')
    a('s_waitcnt lgkmcnt(0)')
    for stp in (4, 2, 1):
        for wv in range(stp):
            a(f'v_pk_add_f32 {vr(ACC+32+2*wv,2)}, {vr(ACC+32+2*wv,2)}, {vr(ACC+32+2*(wv+stp),2)}')
    a(f'buffer_store_dwordx2 {vr(ACC+32,2)}, {vr(MT+2)}, {sr(sWS,4)}, {sr(st0)} offen{STM}')
    a('v_mov_b32 v215, v212'); a('v_mov_b32 v216, v203'); a('v_mov_b32 v217, v200'); a('v_mov_b32 v214, v201')
    stamp(a, 7)
    a('s_waitcnt vmcnt(0)')
    a('s_barrier')
    a(f's_cmp_lg_u32 {sr(sWave)}, 0')
    a('s_cbranch_scc1 f_noat2')
    a('s_mov_b64 s[64:65], exec')
    a('s_mov_b64 exec, 1')
    a('buffer_atomic_add v223, v222, s[4:7], 0 offen offset:4 sc1')
    a('s_mov_b64 exec, s[64:65]')
    a.label('f_noat2')
    stamp(a, 8)
    import f_b
    f_b.gen_attn(a)
    rstamp(a, 101)
    stamp_flush(a, 0, 12, sWS, sWave)
    a.label('f_end')
    a('s_endpgm')
    kernel_desc(a, name, 252)
    return name
```

```python
from asmlib import *

import os
EXP=os.environ.get('EXP','')
CTXM={'a':' nt','b':' sc1','f':' sc1 nt'}.get(os.environ.get('CTXM',''),'')
def gen_attn(a):
    sWS = 28
    sWave, sH, sJ, sTile, sRb = 36, 37, 38, 39, 47
    sT, sTA, sIsB, sWl, sKg, sMK, sCnt, sFb, sKg0 = 8, 9, 10, 11, 12, 13, 14, 15, 16
    st0, st1, st2 = 17, 18, 19
    sMsk = 20
    O = 0; S = [64, 96]; Q = 128; NEGM = 160; F = [176, 192]
    vKa, vVa = 208, 209
    vL = 210
    vDa, vDb, vL16, vG = 212, 213, 214, 215
    vTid, vLane = 216, 217
    vt = 218
    LDS_FLAG = 131072; LDS_KZ = 131072 + 256
    a(f's_lshr_b32 {sr(sIsB)}, {sr(sWave)}, 2')
    a(f's_and_b32 {sr(sWl)}, {sr(sWave)}, 3')
    a(f's_sub_u32 {sr(st0)}, 15, {sr(sJ)}')
    a(f's_lshl_b32 {sr(sT)}, {sr(sTile)}, 1')
    a(f's_add_u32 {sr(sT)}, {sr(sT)}, 2')
    a(f's_lshl_b32 {sr(sTA)}, {sr(st0)}, 1')
    a(f's_add_u32 {sr(sTA)}, {sr(sTA)}, 2')
    a(f's_lshl_b32 {sr(sKg0)}, {sr(sH)}, 20')
    a(f's_lshl_b32 {sr(st0)}, {sr(sWl)}, 12')
    a(f's_add_u32 {sr(sKg0)}, {sr(sKg0)}, {sr(st0)}')
    a(f's_mov_b32 {sr(sFb)}, 0')
    PH = 242
    a(f'v_and_b32 {vr(vt+1)}, 31, {vr(vLane)}')
    a(f'v_lshrrev_b32 {vr(vt+3)}, 5, {vr(vLane)}')
    a(f'v_lshlrev_b32 {vr(vt+3)}, 2, {vr(vt+3)}')
    a(f'v_sub_u32 {vr(vDa)}, {vr(vt+1)}, {vr(vt+3)}')
    a(f's_lshl_b32 {sr(st0)}, {sr(sWl)}, 5')
    a(f'v_add_u32 {vr(vDa)}, {sr(st0)}, {vr(vDa)}')
    a(f'v_subrev_u32 {vr(vDb)}, 64, {vr(vDa)}')
    for r in range(16): a(f'v_mov_b32 {vr(NEGM+r)}, 0')

    def dma4(soff_reg, soff_add, m0_reg, m0_add):
        a(f's_add_u32 m0, {sr(m0_reg)}, {m0_add}')
        a(f's_add_u32 {sr(st2)}, {sr(soff_reg)}, {soff_add}')
        for i in range(4):
            a(f'buffer_load_dwordx4 {vr(vL16)}, {sr(sWS,4)}, {sr(st2)} offen offset:{i*1024} lds')
    def prologue_dma():
        a(f's_lshl_b32 {sr(sMK)}, {sr(sWl)}, 12')
        dma4(sKg0, 0, sMK, 0)
        dma4(sKg0, 32768, sMK, 32768)
        dma4(sKg0, 16384, sMK, 16384)
        dma4(sKg0, 32768+16384, sMK, 32768+16384)
        dma4(sKg0, 65536, sMK, 65536)
        dma4(sKg0, 65536+16384, sMK, 65536+16384)
        dma4(sKg0, 98304, sMK, 98304)
        a(f's_add_u32 {sr(sKg)}, {sr(sKg0)}, {4*32768}')
    sPh = 40
    a(f's_lshl_b32 {sr(sPh)}, {sr(sIsB)}, 3')
    a.label('fa_restart')
    a(f's_cmp_eq_u32 {sr(sIsB)}, 0')
    a('s_cbranch_scc1 fa_ra')
    prologue_dma()
    a.label('fa_ra')
    a('s_waitcnt vmcnt(16)')
    a('s_barrier')
    a.label('fa_start')
    stamp(a,9)

    def M(d, A, B, C):
        a(f'v_mfma_f32_32x32x16_bf16 {vr(d,16)}, {vr(A,4)}, {vr(B,4)}, {vr(C,16)}')
    def kread(f, addr, kb, t): return f'ds_read_b128 {vr(f,4)}, {vr(addr)} offset:{kb*8192+t*1024}'
    def vread(f, addr, s, db): return f'ds_read_b128 {vr(f,4)}, {vr(addr)} offset:{16384+s*4096+db*1024}'

    def chunk_ops(Sb, kb, qt, vDm):
        b = Sb + 16*kb + 4*qt; b8 = Sb + 16*kb + 8*(qt >> 1); d = b8 + 2*(qt & 1)
        g = [[], [], [], []]
        g[0] += [f'v_exp_f32 {vr(b)}, {vr(b)}', f'v_exp_f32 {vr(b+1)}, {vr(b+1)}']
        g[1] += [f'v_exp_f32 {vr(b+2)}, {vr(b+2)}', f'v_exp_f32 {vr(b+3)}, {vr(b+3)}']
        if vDm is not None:
            for e in range(4):
                g[e >> 1].append(f'v_cmp_le_i32 {sr(sMsk+2*e,2)}, {32*kb+8*qt+e}, {vr(vDm)}')
            for e in range(4):
                g[2].append(f'v_cndmask_b32 {vr(b+e)}, 0, {vr(b+e)}, {sr(sMsk+2*e,2)}')
        if 'pkadd' in EXP:
            g[2] += [f'v_pk_add_f32 {vr(vL,2)}, {vr(vL,2)}, {vr(b,2)}', f'v_pk_add_f32 {vr(vL,2)}, {vr(vL,2)}, {vr(b+2,2)}']
        elif 'bal' in EXP and vDm is None:
            g = [[f'v_exp_f32 {vr(b)}, {vr(b)}', f'v_exp_f32 {vr(b+1)}, {vr(b+1)}'],
                 [f'v_exp_f32 {vr(b+2)}, {vr(b+2)}', f'v_add_f32 {vr(vL)}, {vr(vL)}, {vr(b)}', f'v_add_f32 {vr(vL+1)}, {vr(vL+1)}, {vr(b+1)}'],
                 [f'v_exp_f32 {vr(b+3)}, {vr(b+3)}', f'v_add_f32 {vr(vL)}, {vr(vL)}, {vr(b+2)}', f'v_cvt_pk_bf16_f32 {vr(d)}, {vr(b)}, {vr(b+1)}'],
                 [f'v_add_f32 {vr(vL+1)}, {vr(vL+1)}, {vr(b+3)}', f'v_cvt_pk_bf16_f32 {vr(d+1)}, {vr(b+2)}, {vr(b+3)}']]
            if 'noexp' in EXP: g = [[o for o in x if 'exp' not in o] for x in g]
            if 'novalu' in EXP: g = [[], [], [], []]
            return g
        else:
            g[2] += [f'v_add_f32 {vr(vL+(e&1))}, {vr(vL+(e&1))}, {vr(b+e)}' for e in range(4)]
        g[3] += [f'v_cvt_pk_bf16_f32 {vr(d)}, {vr(b)}, {vr(b+1)}', f'v_cvt_pk_bf16_f32 {vr(d+1)}, {vr(b+2)}, {vr(b+3)}']
        return g

    for r in range(64): a(f'v_mov_b32 {vr(O+r)}, 0')
    a(f'v_mov_b32 {vr(vL)}, 0'); a(f'v_mov_b32 {vr(vL+1)}, 0')
    a(f'v_mov_b32 {vr(vKa)}, {vr(vL16)}')
    for i in range(4): a(kread(F[0]+4*i, vKa, 0, i))
    for i in range(4): a(kread(F[1]+4*i, vKa, 0, 4+i))
    for g in range(4):
        kb, t0 = g >> 1, 4*(g & 1)
        a('s_waitcnt lgkmcnt(4)' if g < 3 else 's_waitcnt lgkmcnt(0)')
        for i in range(4):
            d = S[0] + 16*kb
            M(d, F[g & 1]+4*i, Q+4*(t0+i), NEGM if (t0+i) == 0 else d)
            if g < 2: a(kread(F[g & 1]+4*i, vKa, 1, t0+i))
    a(f'v_mov_b32 {vr(vVa)}, {vr(vKa)}')
    a(f'v_add_u32 {vr(vKa)}, 32768, {vr(vKa)}')
    for i in range(4): a(kread(F[0]+4*i, vKa, 0, i))
    for i in range(4): a(vread(F[1]+4*i, vVa, 0, i))
    a(f's_sub_u32 {sr(st0)}, {sr(sT)}, 2')
    a(f's_lshl_b32 {sr(st0)}, {sr(st0)}, 6')
    a(f'v_add_u32 {vr(vt)}, {sr(st0)}, {vr(vDa)}')
    a('s_nop 4')
    for qt in range(4):
        for gl in chunk_ops(S[0], 0, qt, vt):
            for op in gl: a(op)
            a('s_nop 1')
    a(f's_sub_u32 {sr(sCnt)}, {sr(sT)}, 4')
    a(f's_lshr_b32 {sr(sCnt)}, {sr(sCnt)}, 1')
    a(f's_cmp_eq_u32 {sr(sT)}, 2')
    a('s_cbranch_scc1 fa_V2')

    def sync_point(tag, nvm=8):
        a(f's_waitcnt vmcnt({nvm})')
        a('s_barrier')
        a(f's_cmp_eq_u32 {sr(sIsB)}, 0')
        a(f's_cbranch_scc1 fa_nd_{tag}')
        a(f's_add_u32 {sr(st1)}, {sr(sMK)}, 98304')
        a(f's_and_b32 {sr(st1)}, {sr(st1)}, 0x1ffff')
        dma4(sKg, -16384 & 0xffffffff, st1, 16384)
        dma4(sKg, 0, sMK, 0)
        a(f's_add_u32 {sr(sKg)}, {sr(sKg)}, 32768')
        a(f's_add_u32 {sr(sMK)}, {sr(sMK)}, 32768')
        a(f's_and_b32 {sr(sMK)}, {sr(sMK)}, 0x1ffff')
        a.label(f'fa_nd_{tag}')

    def iteration(par, tag, mask_cur, mask_next, do_qk, next_k, next_v, entry):
        cur, nxt = S[par], S[1-par]
        out = list(entry)
        def wait(setname):
            idx = max([i for i, x in enumerate(out) if x == setname], default=-1)
            if idx < 0: return
            n = len(out) - 1 - idx
            a(f's_waitcnt lgkmcnt({n})')
            del out[:idx+1]
        for g in range(8):
            isqk = (g % 2 == 0)
            fs = g & 1; f = F[fs]
            if g == 6:
                sync_point(tag)
                if next_k or next_v:
                    a(f'v_mov_b32 {vr(vt+1)}, {vr(vKa)}')
                    a(f'v_add_u32 {vr(vKa)}, 32768, {vr(vKa)}')
                    a(f'v_and_b32 {vr(vKa)}, 0x1ffff, {vr(vKa)}')
            if g == 7 and (next_k or next_v):
                a(f'v_mov_b32 {vr(vVa)}, {vr(vt+1)}')
            if g < 4: ch = chunk_ops(cur, 1, g, vDm(mask_cur))
            elif do_qk: ch = chunk_ops(nxt, 0, g-4, vDm(mask_next))
            else: ch = None
            active = do_qk or not isqk
            if active: wait(f'F{fs}')
            for i in range(4):
                rd = None
                if isqk:
                    if do_qk:
                        kb, t0 = g >> 2, 4*((g >> 1) & 1)
                        d = nxt + 16*kb
                        M(d, f+4*i, Q+4*(t0+i), NEGM if (t0+i) == 0 else d)
                        if g < 6:
                            g2 = g+2; rd = kread(f+4*i, vKa, g2 >> 2, 4*((g2 >> 1) & 1)+i)
                        elif next_k: rd = kread(f+4*i, vKa, 0, i)
                else:
                    s = g >> 1
                    M(O+16*i, f+4*i, cur+16*(s >> 1)+8*(s & 1), O+16*i)
                    if g < 7: rd = vread(f+4*i, vVa, s+1, i)
                    elif next_v: rd = vread(f+4*i, vVa, 0, i)
                if rd:
                    if 'nods' not in EXP or tag not in ('e','o'): a(rd)
                    out.append(f'F{fs}')
                if ch:
                    for op in ch[i]: a(op)
                    if not active and i < 3: a('s_nop 0')
        return out
    def vDm(m): return {None: None, 'a': vDa, 'b': vDb}[m]
    full = ['F0']*4 + ['F1']*4
    a.label('fa_loop')
    a(f's_cmp_lt_u32 {sr(sPh)}, 6')
    a('s_cbranch_scc1 fa_side')
    a.label('fa_loop_b')
    o = iteration(0, 'e', None, None, True, True, True, full); assert o == full, o
    a(f's_cmp_eq_u32 {sr(sCnt)}, 0')
    a('s_cbranch_scc1 fa_V1')
    o = iteration(1, 'o', None, None, True, True, True, full); assert o == full
    a(f's_sub_u32 {sr(sCnt)}, {sr(sCnt)}, 1')
    a('s_branch fa_loop')
    a.label('fa_V1')
    o = iteration(1, 'v1', None, 'a', True, True, True, full); assert o == full
    a.label('fa_V2')
    o = iteration(0, 'v2', 'a', 'b', True, False, True, full); assert o == ['F1']*4, o
    o = iteration(1, 'v3', 'b', None, False, False, False, o); assert o == [], o
    stamp(a,10)
    def lcheck(tag):
        a(f'v_add_f32 {vr(vL)}, {vr(vL)}, {vr(vL+1)}')
        a(f'v_mov_b32 {vr(vL+1)}, {vr(vL)}')
        a('s_nop 1')
        a(f'v_permlane32_swap_b32 {vr(vL)}, {vr(vL+1)}')
        a('s_nop 1')
        a(f'v_add_f32 {vr(vL)}, {vr(vL)}, {vr(vL+1)}')
        a(f's_cmp_lg_u32 {sr(sFb)}, 0')
        a(f's_cbranch_scc1 fa_ok{tag}')
        a(f'v_mov_b32 {vr(vt)}, 0x21800000')
        a(f'v_mov_b32 {vr(vt+1)}, 0x5d800000')
        a(f'v_cmp_ge_f32 {sr(sMsk,2)}, {vr(vL)}, {vr(vt)}')
        a(f'v_cmp_le_f32 {sr(sMsk+2,2)}, {vr(vL)}, {vr(vt+1)}')
        a('s_nop 1')
        a(f's_and_b64 {sr(sMsk,2)}, {sr(sMsk,2)}, {sr(sMsk+2,2)}')
        a(f's_not_b64 {sr(sMsk,2)}, {sr(sMsk,2)}')
        a(f's_cmp_eq_u64 {sr(sMsk,2)}, 0')
        a(f's_cbranch_scc1 fa_ok{tag}')
        a(f'v_mov_b32 {vr(vt)}, {LDS_FLAG}')
        a(f'v_mov_b32 {vr(vt+1)}, 1')
        a(f'ds_write_b32 {vr(vt)}, {vr(vt+1)}')
        a.label(f'fa_ok{tag}')
    def epi_store():
        a(f'v_rcp_f32 {vr(vL)}, {vr(vL)}')
        a(f'v_sub_f32 {vr(vt)}, 1.0, {vr(vG)}')
        a(f'v_mul_f32 {vr(vL)}, {vr(vL)}, {vr(vt)}')
        a(f's_mul_i32 {sr(st0)}, {sr(sRb)}, {288*1024}')
        a(f's_lshl_b32 {sr(st1)}, {sr(sH)}, 13')
        a(f's_add_u32 {sr(st0)}, {sr(st0)}, {sr(st1)}')
        a(f's_add_u32 {sr(st0)}, {sr(st0)}, {WS_CTX}')
        for db in range(4):
            d = O + 16*db
            for r in range(16): a(f'v_mul_f32 {vr(d+r)}, {vr(vL)}, {vr(d+r)}')
            for g in range(2):
                for q in range(4):
                    a(f'v_cvt_pk_bf16_f32 {vr(d+8*g+q)}, {vr(d+8*g+2*q)}, {vr(d+8*g+2*q+1)}')
            if db == 2: a(f's_add_u32 {sr(st0)}, {sr(st0)}, 4096')
            for g in range(2):
                a(f'buffer_store_dwordx4 {vr(d+8*g,4)}, {vr(vL16)}, {sr(sWS,4)}, {sr(st0)} offen offset:{((2*db+g)&3)*1024}{CTXM}')
    lcheck('')
    a(f's_cmp_eq_u32 {sr(sIsB)}, 0')
    a('s_cbranch_scc1 fa_fin')
    epi_store()
    sync_point('ld0', 16)
    sync_point('ld1', 16)
    a(f's_sub_u32 {sr(sCnt)}, {sr(sTA)}, {sr(sT)}')
    a(f's_sub_u32 {sr(sCnt)}, {sr(sCnt)}, 2')
    a(f's_cmp_eq_u32 {sr(sCnt)}, 0')
    a('s_cbranch_scc1 fa_fin')
    a.label('fa_ld')
    sync_point('ld')
    a(f's_sub_u32 {sr(sCnt)}, {sr(sCnt)}, 1')
    a(f's_cmp_lg_u32 {sr(sCnt)}, 0')
    a('s_cbranch_scc1 fa_ld')
    a.label('fa_fin')
    a('s_waitcnt vmcnt(0) lgkmcnt(0)')
    a('s_barrier')
    a(f's_cmp_lg_u32 {sr(sFb)}, 0')
    a('s_cbranch_scc1 fa_epi')
    a(f'v_mov_b32 {vr(vt)}, {LDS_FLAG}')
    a(f'ds_read_b32 {vr(vt+1)}, {vr(vt)}')
    a('s_waitcnt lgkmcnt(0)')
    a(f'v_readfirstlane_b32 {sr(st0)}, {vr(vt+1)}')
    a(f's_cmp_eq_u32 {sr(st0)}, 0')
    a('s_cbranch_scc1 fa_epi')
    a(f's_mov_b32 {sr(sFb)}, 1')
    vM = vt+2; vDg = vt+3; vNI = vt+4
    a(f'v_mov_b32 {vr(vM)}, 0xff7fffff')
    a(f'v_mov_b32 {vr(vNI)}, 0xff7fffff')
    a(f's_sub_u32 {sr(st0)}, {sr(sT)}, 2')
    a(f's_lshl_b32 {sr(st0)}, {sr(st0)}, 6')
    a(f'v_add_u32 {vr(vDg)}, {sr(st0)}, {vr(vDa)}')
    a(f's_lshl_b32 {sr(st1)}, {sr(sH)}, 20')
    a(f's_mov_b32 {sr(sCnt)}, {sr(sT)}')
    a.label('fa_mx')
    for kb in range(2):
        for t in range(8):
            a(f's_add_u32 {sr(st2)}, {sr(st1)}, {kb*8192 + t*1024}')
            a(f'buffer_load_dwordx4 {vr(O+4*t,4)}, {vr(vL16)}, {sr(sWS,4)}, {sr(st2)} offen')
        a('s_waitcnt vmcnt(0)')
        for t in range(8):
            a(f'v_mfma_f32_32x32x16_bf16 {vr(S[0],16)}, {vr(O+4*t,4)}, {vr(Q+4*t,4)}, {"0" if t==0 else vr(S[0],16)}')
        a('s_nop 7'); a('s_nop 7')
        for r in range(16):
            a(f'v_cmp_le_i32 vcc, {32*kb + 8*(r >> 2) + (r & 3)}, {vr(vDg)}')
            a('s_nop 1')
            a(f'v_cndmask_b32 {vr(S[0]+r)}, {vr(vNI)}, {vr(S[0]+r)}, vcc')
            a(f'v_max_f32 {vr(vM)}, {vr(vM)}, {vr(S[0]+r)}')
    a(f'v_subrev_u32 {vr(vDg)}, 64, {vr(vDg)}')
    a(f's_add_u32 {sr(st1)}, {sr(st1)}, 32768')
    a(f's_sub_u32 {sr(sCnt)}, {sr(sCnt)}, 1')
    a(f's_cmp_lg_u32 {sr(sCnt)}, 0')
    a('s_cbranch_scc1 fa_mx')
    a(f'v_mov_b32 {vr(vNI)}, {vr(vM)}')
    a('s_nop 1')
    a(f'v_permlane32_swap_b32 {vr(vM)}, {vr(vNI)}')
    a('s_nop 1')
    a(f'v_max_f32 {vr(vM)}, {vr(vM)}, {vr(vNI)}')
    for r in range(16): a(f'v_sub_f32 {vr(NEGM+r)}, 0, {vr(vM)}')
    a('s_branch fa_restart')
    a.label('fa_epi')
    a(f'v_add_u32 {vr(vt+4)}, {LDS_KZ}, {vr(vL16)}')
    a(f'ds_read_b128 {vr(64,4)}, {vr(vt+4)}')
    a(f'ds_read_b128 {vr(68,4)}, {vr(vt+4)} offset:1024')
    a('s_waitcnt lgkmcnt(0)')
    mfma(a, 80, 64, PH, 'zero'); mfma(a, 80, 68, PH+4)
    a(f's_cmp_lg_u32 {sr(sIsB)}, 0')
    a('s_cbranch_scc1 fa_afin')
    epi_store()
    a.label('fa_afin')
    a('s_nop 7'); a('s_nop 7')
    a(f'v_add_f32 {vr(88)}, 0x358637bd, {vr(88)}')
    a(f'v_rcp_f32 {vr(88)}, {vr(88)}')
    a(f's_mul_i32 {sr(st0)}, {sr(sRb)}, {288*1024}')
    a(f'v_mul_f32 {vr(88)}, {vr(vG)}, {vr(88)}')
    a(f's_lshl_b32 {sr(st1)}, {sr(sH)}, 10')
    for r in range(8): a(f'v_mul_f32 {vr(80+r)}, {vr(88)}, {vr(80+r)}')
    for q in range(4): a(f'v_cvt_pk_bf16_f32 {vr(80+q)}, {vr(80+2*q)}, {vr(80+2*q+1)}')
    a(f's_add_u32 {sr(st0)}, {sr(st0)}, {sr(st1)}')
    a(f's_add_u32 {sr(st0)}, {sr(st0)}, {WS_CTX + 256*1024}')
    a(f'buffer_store_dwordx4 {vr(80,4)}, {vr(vL16)}, {sr(sWS,4)}, {sr(st0)} offen')
    a('s_waitcnt vmcnt(0)')
    stamp(a,11)
    a('s_branch fa_done')
    a.label('fa_side')
    a(f's_cmp_eq_u32 {sr(sPh)}, 1'); a('s_cbranch_scc1 fa_s1')
    a(f's_cmp_eq_u32 {sr(sPh)}, 2'); a('s_cbranch_scc1 fa_s2')
    a(f's_cmp_eq_u32 {sr(sPh)}, 3'); a('s_cbranch_scc1 fa_s3')
    a(f's_cmp_eq_u32 {sr(sPh)}, 4'); a('s_cbranch_scc1 fa_s4')
    a(f's_cmp_eq_u32 {sr(sPh)}, 5'); a('s_cbranch_scc1 fa_s5')
    def kvp_loads(r0):
        a(f's_lshl_b32 {sr(st0)}, {sr(sH)}, 15')
        a(f's_add_u32 {sr(st0)}, {sr(st0)}, {WS_KVP + r0*4096}')
        for rt in range(4):
            if rt: a(f's_add_u32 {sr(st0)}, {sr(st0)}, 4096')
            a(f'buffer_load_dwordx4 {vr(222+4*rt,4)}, {vr(221)}, {sr(sWS,4)}, {sr(st0)} offen sc1')
    a(f's_lshl_b32 {sr(st0)}, {sr(sH)}, 3')
    a(f'v_mov_b32 {vr(221)}, {sr(st0)}')
    a(f'buffer_load_dword {vr(220)}, {vr(221)}, s[4:7], 0 offen offset:4 sc1')
    a(f's_mov_b32 {sr(sPh)}, 1'); a('s_branch fa_loop_b')
    a.label('fa_s1')
    a(f's_mov_b32 {sr(st1)}, 40000')
    a.label('fa_s1_spin')
    a('s_waitcnt vmcnt(0)')
    a(f'v_readfirstlane_b32 {sr(st0)}, {vr(220)}')
    a(f's_cmp_ge_u32 {sr(st0)}, 8')
    a('s_cbranch_scc1 fa_s1_ok')
    a(f'buffer_load_dword {vr(220)}, {vr(221)}, s[4:7], 0 offen offset:4 sc1')
    a(f's_sub_u32 {sr(st1)}, {sr(st1)}, 1')
    a(f's_cmp_lg_u32 {sr(st1)}, 0')
    a('s_cbranch_scc1 fa_s1_spin')
    a('s_waitcnt vmcnt(0)')
    a.label('fa_s1_ok')
    a(f'v_lshlrev_b32 {vr(221)}, 4, {vr(vTid)}')
    kvp_loads(0)
    a(f's_mov_b32 {sr(sPh)}, 2'); a('s_branch fa_loop_b')
    a.label('fa_s2')
    a('s_waitcnt vmcnt(0)')
    for e in range(4):
        a(f'v_add_f32 {vr(238+e)}, {vr(222+e)}, {vr(226+e)}')
        a(f'v_add_f32 {vr(230+e)}, {vr(230+e)}, {vr(234+e)}')
    for e in range(4): a(f'v_add_f32 {vr(238+e)}, {vr(238+e)}, {vr(230+e)}')
    kvp_loads(4)
    a(f's_mov_b32 {sr(sPh)}, 3'); a('s_branch fa_loop_b')
    a.label('fa_s3')
    a('s_waitcnt vmcnt(0)')
    for e in range(4):
        a(f'v_add_f32 {vr(222+e)}, {vr(222+e)}, {vr(226+e)}')
        a(f'v_add_f32 {vr(230+e)}, {vr(230+e)}, {vr(234+e)}')
    for e in range(4): a(f'v_add_f32 {vr(238+e)}, {vr(238+e)}, {vr(222+e)}')
    for e in range(4): a(f'v_add_f32 {vr(238+e)}, {vr(238+e)}, {vr(230+e)}')
    a(f'v_cvt_pk_bf16_f32 {vr(238)}, {vr(238)}, {vr(239)}')
    a(f'v_cvt_pk_bf16_f32 {vr(239)}, {vr(240)}, {vr(241)}')
    a(f'v_bfe_u32 {vr(222)}, {vr(vTid)}, 1, 1')
    a(f'v_lshlrev_b32 {vr(222)}, 10, {vr(222)}')
    a(f'v_lshrrev_b32 {vr(223)}, 2, {vr(vTid)}')
    a(f'v_lshl_add_u32 {vr(222)}, {vr(223)}, 4, {vr(222)}')
    a(f'v_and_b32 {vr(223)}, 1, {vr(vTid)}')
    a(f'v_lshl_add_u32 {vr(222)}, {vr(223)}, 3, {vr(222)}')
    a(f'v_add_u32 {vr(222)}, {LDS_KZ}, {vr(222)}')
    a(f'ds_write_b64 {vr(222)}, {vr(238,2)}')
    a('s_waitcnt lgkmcnt(0)')
    a(f's_mov_b32 {sr(sPh)}, 4'); a('s_branch fa_loop_b')
    LDS_WT = 133632; vWT, vWTr = 240, 241; sW = 32
    a.label('fa_s4')
    l = vr(vLane)
    a(f'v_lshrrev_b32 {vr(vWT)}, 2, {l}')
    a(f'v_lshlrev_b32 {vr(vWT)}, 10, {vr(vWT)}')
    a(f'v_and_b32 {vr(220)}, 3, {l}')
    a(f'v_lshl_add_u32 {vr(vWT)}, {vr(220)}, 4, {vr(vWT)}')
    a(f'v_bfe_u32 {vr(221)}, {l}, 2, 2')
    a(f'v_lshrrev_b32 {vr(222)}, 5, {l}')
    a(f'v_lshl_add_u32 {vr(221)}, {vr(222)}, 2, {vr(221)}')
    a(f'v_lshlrev_b32 {vr(221)}, 6, {vr(221)}')
    a(f'v_bfe_u32 {vr(222)}, {l}, 4, 1')
    a(f'v_lshl_add_u32 {vr(221)}, {vr(222)}, 5, {vr(221)}')
    a(f'v_lshl_add_u32 {vr(221)}, {vr(220)}, 3, {vr(221)}')
    a(f's_mul_i32 s99, {sr(sWl)}, 5120')
    a(f's_add_u32 s99, s99, {LDS_WT}')
    a(f'v_add_u32 {vr(vWTr)}, s99, {vr(221)}')
    a('s_lshr_b32 s64, s2, 4')
    a('s_and_b32 s65, s2, 15')
    a('s_mul_i32 s65, s65, 18')
    a(f's_add_u32 s65, s65, {sr(sWl)}')
    for it in range(5):
        for x in [f's_add_u32 s66, s65, {4*it}', 's_cmp_lt_u32 s66, 256',
               f's_cselect_b32 {sr(sW)}, s56, s58', f's_cselect_b32 {sr(sW+1)}, s57, s59', 's_cselect_b32 s67, 0, 256',
               f's_cselect_b32 {sr(sW+2)}, 8, 1', f's_lshl_b32 {sr(sW+2)}, {sr(sW+2)}, 19',
               f's_and_b32 {sr(sW+1)}, {sr(sW+1)}, 0xffff', f's_mov_b32 {sr(sW+3)}, 0x00020000',
               's_sub_u32 s67, s66, s67', 's_lshl_b32 s67, s67, 14', 's_lshl_b32 s68, s64, 6', 's_add_u32 s67, s67, s68',
               's_mul_i32 s68, s64, 288', 's_add_u32 s68, s68, s66', 's_lshl_b32 s68, s68, 10', f's_add_u32 {sr(92+it)}, s68, {WS_WT}']: a(x)
        if it == 4:
            a(f's_cmp_ge_u32 {sr(sWl)}, 2'); a('s_cselect_b32 s67, 0x40000000, s67'); a(f's_cselect_b32 {sr(92+it)}, 0x40000000, {sr(92+it)}')
        a(f's_add_u32 m0, s99, {it*1024}'); a('s_nop 0')
        a(f'buffer_load_dwordx4 {vr(vWT)}, {sr(sW,4)}, s67 offen lds')
    a(f's_mov_b32 {sr(sPh)}, 5'); a('s_branch fa_loop_b')
    a.label('fa_s5')
    a('s_waitcnt vmcnt(0)')
    for it in range(5):
        a(f'ds_read_b64_tr_b16 {vr(220+4*it,2)}, {vr(vWTr)} offset:{it*1024}')
        a(f'ds_read_b64_tr_b16 {vr(222+4*it,2)}, {vr(vWTr)} offset:{it*1024+512}')
    a('s_waitcnt lgkmcnt(0)')
    for it in range(5):
        a(f'buffer_store_dwordx4 {vr(220+4*it,4)}, {vr(vL16)}, {sr(sWS,4)}, {sr(92+it)} offen')
    a(f's_mov_b32 {sr(sPh)}, 6'); a('s_branch fa_loop_b')
    a.label('fa_done')
```

```python
from asmlib import *
import struct, os
QSCALE = 0.127517432
def f2u(x): return struct.unpack('<I', struct.pack('<f', x))[0]
EXP = os.environ.get('EXP', '')
STM = {'a':' nt','b':' sc1','c':' sc0 sc1','d':' sc0 sc1 nt','e':' sc0','p':'','f':' sc1 nt'}.get(os.environ.get('STM','b'),'')

class Trk:
    def __init__(self, a, name): self.a, self.name, self.out = a, name, []
    def issue(self, tag): self.out.append(tag)
    def need(self, tags):
        idx = max([i for i, x in enumerate(self.out) if x in tags], default=-1)
        if idx < 0: return
        n = len(self.out) - 1 - idx
        self.a(f's_waitcnt {self.name}({n})')
        del self.out[:idx+1]
    def drain(self):
        if self.out: self.a(f's_waitcnt {self.name}(0)')
        self.out = []

def gen_f(a):
    name = 'f_kernel'
    kernel_header(a, name)
    sX1, sX2, sW1, sWq, sWA, sWS = 8, 12, 16, 20, 24, 28
    sT = 32
    sWave, sH, sRt = 36, 37, 38
    sXb, sW1b, sWqb, sWAb = 40, 41, 42, 43
    sM, sM2, sM1, sRb = 44, 45, 46, 47
    sTile, sXb2 = 39, 3
    st0, st1, st2, st3 = 48, 49, 50, 51
    sO = 72
    ACC = 0; FR = 128
    vXa = 184; vWa = 192
    vXE, vXO, vW, vA = 196, 197, 198, 199
    vLane, vL16, vG, vTid = 200, 201, 202, 203
    vGF = 204; vGA = 212; hh, nn = 213, 214
    vt = 215
    BIG = 218
    lg = Trk(a, 'lgkmcnt'); vm = Trk(a, 'vmcnt')
    a('s_cmp_ge_u32 s2, 256')
    a('s_cbranch_scc1 f_end')
    make_srd(a, sX1, 40, 0); make_srd(a, sW1, 56, 0)
    a('s_load_dwordx2 s[54:55], s[0:1], 64')
    make_srd(a, sWS, 104, 0)
    make_srd(a, 4, 96, 0)
    make_srd(a, sX2, 0, 0); make_srd(a, sWq, 48, 0); make_srd(a, sWA, 8, 0)
    a('s_load_dwordx2 s[56:57], s[0:1], 72')
    a('s_load_dwordx2 s[58:59], s[0:1], 24')
    a('s_load_dwordx2 s[60:61], s[0:1], 80')
    a('s_load_dwordx2 s[62:63], s[0:1], 16')
    stamp(a, 0)
    rstamp(a, 100)
    a(f'v_lshrrev_b32 v1, 6, v0')
    a(f'v_mov_b32 {vr(vTid)}, v0')
    a(f'v_and_b32 {vr(vLane)}, 63, v0')
    a(f'v_readfirstlane_b32 {sr(sWave)}, v1')
    a(f's_and_b32 {sr(st0)}, s2, 7')
    a(f's_lshr_b32 {sr(st1)}, s2, 3')
    a(f's_lshr_b32 {sr(st2)}, {sr(st1)}, 3')
    a(f's_lshl_b32 {sr(sH)}, {sr(st0)}, 2')
    a(f's_add_u32 {sr(sH)}, {sr(sH)}, {sr(st2)}')
    a(f's_and_b32 {sr(sRt)}, {sr(st1)}, 7')
    if 'same' in EXP:
        a(f's_lshl_b32 {sr(sH)}, {sr(st0)}, 2'); a(f's_mov_b32 {sr(sRt)}, 0')
    if 'nomap' in EXP:
        a(f's_lshr_b32 {sr(sH)}, s2, 3'); a(f's_and_b32 {sr(sRt)}, s2, 7')
    if 'allsame' in EXP:
        a(f's_mov_b32 {sr(sH)}, 0'); a(f's_mov_b32 {sr(sRt)}, 0')
    a(f's_lshl_b32 {sr(sM)}, {sr(sWave)}, 12')
    a(f's_lshl_b32 {sr(sM2)}, {sr(sWave)}, 11')
    a(f's_lshl_b32 {sr(sM1)}, {sr(sWave)}, 10')
    a(f's_sub_u32 {sr(st0)}, 15, {sr(sRt)}')
    a(f's_cmp_lt_u32 {sr(sWave)}, 4')
    a(f's_cselect_b32 {sr(sTile)}, {sr(st0)}, {sr(sRt)}')
    a(f's_lshl_b32 {sr(sRb)}, {sr(sTile)}, 2')
    a(f's_and_b32 {sr(st0)}, {sr(sWave)}, 3')
    a(f's_add_u32 {sr(sRb)}, {sr(sRb)}, {sr(st0)}')
    a(f's_lshl_b32 {sr(sXb2)}, {sr(sRb)}, 15')
    l = vr(vLane)
    t = [vr(FR+i) for i in range(8)]
    a(f'v_lshrrev_b32 {t[0]}, 3, {l}')
    a(f'v_and_b32 {t[1]}, 7, {l}')
    a(f'v_lshrrev_b32 {t[2]}, 4, {l}')
    a(f'v_xor_b32 {t[3]}, {t[1]}, {t[2]}')
    a(f'v_lshlrev_b32 {t[3]}, 4, {t[3]}')
    a(f'v_lshl_add_u32 {vr(vXE)}, {t[0]}, 10, {t[3]}')
    a(f'v_xor_b32 {vr(vXO)}, 64, {vr(vXE)}')
    a(f'v_and_b32 {t[2]}, 1, {t[2]}')
    a(f'v_lshlrev_b32 {t[2]}, 2, {t[2]}')
    a(f'v_xor_b32 {t[1]}, {t[1]}, {t[2]}')
    a(f'v_lshlrev_b32 {t[3]}, 4, {t[1]}')
    a(f'v_lshl_add_u32 {vr(vW)}, {t[0]}, 13, {t[3]}')
    a(f'v_mul_u32_u24 {vr(vA)}, 3072, {t[0]}')
    a(f'v_lshrrev_b32 {t[2]}, 1, {t[1]}')
    a(f'v_lshl_add_u32 {vr(vA)}, {t[2]}, 10, {vr(vA)}')
    a(f'v_and_b32 {t[2]}, 1, {t[1]}')
    a(f'v_lshl_add_u32 {vr(vA)}, {t[2]}, 4, {vr(vA)}')
    a(f'v_mov_b32 {t[3]}, 0x40000000')
    a(f'v_cmp_lt_u32 vcc, 5, {t[1]}')
    a(f'v_lshlrev_b32 {vr(vL16)}, 4, {l}')
    a(f'v_lshrrev_b32 {vr(hh)}, 5, {l}')
    a(f'v_cndmask_b32 {vr(vA)}, {vr(vA)}, {t[3]}, vcc')
    a(f'v_and_b32 {vr(nn)}, 31, {l}')
    a(f's_lshl_b32 {sr(sXb)}, {sr(sRt)}, 18')
    a(f's_lshl_b32 {sr(st0)}, {sr(sWave)}, 15')
    a(f's_add_u32 {sr(sXb)}, {sr(sXb)}, {sr(st0)}')
    a(f's_and_b32 {sr(st0)}, {sr(sWave)}, 1')
    a(f's_lshl_b32 {sr(sW1b)}, {sr(st0)}, 18')
    a(f's_lshl_b32 {sr(st1)}, {sr(sH)}, 8')
    a(f's_add_u32 {sr(sW1b)}, {sr(sW1b)}, {sr(st1)}')
    a(f's_bfe_u32 {sr(st0)}, {sr(sWave)}, 0x10001')
    a(f's_lshl_b32 {sr(st0)}, {sr(st0)}, 7')
    a(f's_add_u32 {sr(sW1b)}, {sr(sW1b)}, {sr(st0)}')
    a(f's_and_b32 {sr(st0)}, {sr(sWave)}, 3')
    a(f's_lshl_b32 {sr(sWqb)}, {sr(st0)}, 17')
    a(f's_add_u32 {sr(sWqb)}, {sr(sWqb)}, {sr(st1)}')
    a(f's_lshr_b32 {sr(st0)}, {sr(sWave)}, 2')
    a(f's_lshl_b32 {sr(st0)}, {sr(st0)}, 7')
    a(f's_add_u32 {sr(sWqb)}, {sr(sWqb)}, {sr(st0)}')
    a(f's_mul_i32 {sr(sWAb)}, {sr(sWave)}, {8*3072}')
    a(f's_lshl_b32 {sr(st0)}, {sr(sH)}, 5')
    a(f's_add_u32 {sr(sWAb)}, {sr(sWAb)}, {sr(st0)}')
    a('s_waitcnt lgkmcnt(0)')
    fin_srd(a, sX1, 2048*1024)
    a(f's_cmp_lt_u32 {sr(sWave)}, 4')
    a(f's_cselect_b32 {sr(sW1)}, {sr(sW1)}, s54')
    a(f's_cselect_b32 {sr(sW1+1)}, {sr(sW1+1)}, s55')
    fin_srd(a, sW1, 512*8192)

    def dma_items(s):
        buf = (s & 1) * 65536; p2 = s >= 8; st = s & 7
        X = sX2 if p2 else sX1
        it = []
        for j in range(4):
            it.append([f's_add_u32 m0, {sr(sM)}, {buf + j*1024}', f's_add_u32 {sr(st0)}, {sr(sXb2 if p2 else sXb)}, {st*128 + j*8192}',
                       f'buffer_load_dwordx4 {vr(vXE if j%2==0 else vXO)}, {sr(X,4)}, {sr(st0)} offen lds'])
        if not p2:
            for j in range(4):
                it.append([f's_add_u32 m0, {sr(sM)}, {buf+32768+j*1024}', f's_add_u32 {sr(st0)}, {sr(sW1b)}, {st*64*8192 + j*8*8192}',
                           f'buffer_load_dwordx4 {vr(vW)}, {sr(sW1,4)}, {sr(st0)} offen lds'])
        else:
            for j in range(2):
                it.append([f's_add_u32 m0, {sr(sM2)}, {buf+32768+j*1024}', f's_add_u32 {sr(st0)}, {sr(sWqb)}, {st*64*8192 + j*8*8192}',
                           f'buffer_load_dwordx4 {vr(vW)}, {sr(sWq,4)}, {sr(st0)} offen lds'])
            it.append([f's_add_u32 m0, {sr(sM1)}, {buf+32768+16384}', f's_add_u32 {sr(st0)}, {sr(sWAb)}, {st*64*3072}',
                       f'buffer_load_dwordx4 {vr(vA)}, {sr(sWA,4)}, {sr(st0)} offen lds'])
        if 'nodma' in EXP and s >= 2: it = []
        return [(x, f'dma{s}') for x in it]
    def emit_vm(item):
        ins, tag = item
        for x in ins: a(x)
        vm.issue(tag)
    for it in dma_items(0): emit_vm(it)
    fin_srd(a, sX2, 2048*1024); fin_srd(a, sWq, 512*8192); fin_srd(a, sWA, 512*3072); fin_srd(a, sWS, WS_BYTES); fin_srd(a, 4, 256)
    a(f's_mov_b32 {sr(sT)}, s60'); a(f's_mov_b32 {sr(sT+1)}, s61'); fin_srd(a, sT, 1024)
    emit_vm((['s_mov_b32 m0, 131072', 's_nop 0', f'buffer_load_dwordx4 {vr(vL16)}, {sr(sT,4)}, 0 offen lds'], 'dma0'))
    LDS_WP = 156672
    a(f's_mov_b32 {sr(sT)}, s62'); a(f's_mov_b32 {sr(sT+1)}, s63'); fin_srd(a, sT, 32*512)
    a(f's_lshl_b32 {sr(st3)}, {sr(sH)}, 9')
    emit_vm(([f's_mov_b32 m0, {LDS_WP}', 's_nop 0', f'buffer_load_dwordx4 {vr(vL16)}, {sr(sT,4)}, {sr(st3)} offen lds'], 'dma0'))
    for it in dma_items(1): emit_vm(it)

    vPX, vPW, vPQ_, vPA_, vPD = 250, 251, 215, 216, 253
    a(f's_lshr_b32 s64, s2, 3')
    a(f's_lshl_b32 s65, s64, 16')
    a(f's_lshl_b32 s66, {sr(sWave)}, 7')
    a(f's_add_u32 s95, s65, s66')
    a(f'v_lshlrev_b32 {vr(vPX)}, 10, {l}')
    a(f's_and_b32 s65, {sr(sWave)}, 3')
    a(f's_lshl_b32 s66, s64, 2')
    a(f's_add_u32 s65, s65, s66')
    a(f's_lshl_b32 s65, s65, 15')
    a(f's_and_b32 s66, s2, 7')
    a(f's_lshl_b32 s66, s66, 10')
    a(f's_add_u32 s96, s65, s66')
    a(f'v_lshrrev_b32 {t[0]}, 3, {l}')
    a(f'v_and_b32 {t[1]}, 7, {l}')
    a(f'v_lshlrev_b32 {vr(vPW)}, 13, {t[0]}')
    a(f'v_lshl_add_u32 {vr(vPW)}, {t[1]}, 7, {vr(vPW)}')
    a(f'v_mov_b32 {t[2]}, 0x40000000')
    a(f'v_cmp_lt_u32 s[68:69], 15, {l}')
    a(f'v_cmp_lt_u32 vcc, 31, {l}')
    a('s_nop 0')
    a(f'v_cndmask_b32 {vr(vPQ_)}, {vr(vPW)}, {t[2]}, s[68:69]')
    a(f'v_cndmask_b32 {vr(vPW)}, {vr(vPW)}, {t[2]}, vcc')
    a(f's_lshl_b32 s65, s64, 3')
    a(f's_add_u32 s65, s65, {sr(sWave)}')
    a(f's_lshl_b32 s97, s65, 14')
    a(f's_add_u32 s97, s97, s66')
    a(f'v_lshrrev_b32 {t[0]}, 2, {l}')
    a(f'v_mul_u32_u24 {t[0]}, 3072, {t[0]}')
    a(f'v_and_b32 {t[1]}, 3, {l}')
    a(f'v_lshl_add_u32 {vr(vPA_)}, {t[1]}, 10, {t[0]}')
    a(f'v_cmp_eq_u32 s[68:69], 3, {t[1]}')
    a(f'v_cmp_lt_u32 vcc, 7, {l}')
    a(f's_mul_i32 s98, s65, {2*3072}')
    a(f's_lshr_b32 s66, s66, 3')
    a(f's_add_u32 s98, s98, s66')
    a(f'v_cndmask_b32 {vr(vPA_)}, {vr(vPA_)}, {t[2]}, s[68:69]')
    a(f'v_cndmask_b32 {vr(vPA_)}, {vr(vPA_)}, {t[2]}, vcc')
    a('s_lshr_b32 s99, s2, 5')
    LEAD = int(os.environ.get('LEAD', '3'))
    def pf_for(tau):
        def one(cond_reg, val, vaddr, srd, soff):
            return ('vm', ([f's_cmp_eq_u32 {sr(cond_reg)}, {val}', f's_cselect_b32 s68, {soff}, 0x40000000',
                            f'buffer_load_dword {vr(vPD)}, {vr(vaddr)}, {sr(srd,4)}, s68 offen'], 'pf'))
        if 'nopf' in EXP: return []
        if tau < 8: return [one(sWave, tau, vPX, sX1, 's95'), one(99, tau, vPW, sW1, 's96')]
        return [one(sWave, tau-8, vPX, sX2, 's95'), one(99, tau-8, vPQ_, sWq, 's97'), one(99, tau-8, vPA_, sWA, 's98')]
    def pf_at(s_):
        r = []
        if s_ == 0:
            for tau in range(2, LEAD): r += pf_for(tau)
        if s_ + LEAD < 8: r += pf_for(s_ + LEAD)
        for tau in P2MAP.get(s_, []): r += pf_for(tau)
        return r
    P2MAP = {'a': {2:[8], 3:[9], 4:[10,11], 5:[12,13], 6:[14,15]},
             'b': {3:[8], 4:[9,10], 5:[11,12], 6:[13,14], 7:[15]},
             'c': {1:[8], 2:[9], 3:[10], 4:[11], 5:[12,13], 6:[14,15]},
             'd': {4:[8,9], 5:[10,11], 6:[12,13], 7:[14,15]}}[os.environ.get('P2M', 'b')]
    stamp(a, 1)
    a(f'v_lshrrev_b32 {t[0]}, 1, {vr(nn)}')
    a(f'v_and_b32 {t[0]}, 7, {t[0]}')
    a(f'v_xor_b32 {t[0]}, {t[0]}, {vr(hh)}')
    a(f'v_lshlrev_b32 {t[0]}, 4, {t[0]}')
    a(f'v_lshl_add_u32 {t[6]}, {vr(nn)}, 7, {t[0]}')
    a(f'v_bfe_u32 {t[1]}, {l}, 2, 2')
    a(f'v_lshl_add_u32 {t[2]}, {vr(hh)}, 3, {t[1]}')
    a(f'v_lshlrev_b32 {t[2]}, 7, {t[2]}')
    a(f'v_bfe_u32 {t[3]}, {l}, 4, 1')
    a(f'v_lshlrev_b32 {t[3]}, 5, {t[3]}')
    a(f'v_and_b32 {t[4]}, 3, {l}')
    a(f'v_lshl_add_u32 {t[3]}, {t[4]}, 3, {t[3]}')
    a(f'v_lshrrev_b32 {t[4]}, 1, {t[1]}')
    a(f'v_lshlrev_b32 {t[4]}, 6, {t[4]}')
    a(f'v_xor_b32 {t[3]}, {t[3]}, {t[4]}')
    a(f'v_add_u32 {t[7]}, {t[2]}, {t[3]}')
    sXP1, sWP1 = 52, 53
    a(f's_bfe_u32 {sr(sXP1)}, {sr(sWave)}, 0x10001')
    a(f's_lshl_b32 {sr(sXP1)}, {sr(sXP1)}, 14')
    a(f's_lshr_b32 {sr(st1)}, {sr(sWave)}, 2')
    a(f's_lshl_b32 {sr(st1)}, {sr(st1)}, 1')
    a(f's_and_b32 {sr(st2)}, {sr(sWave)}, 1')
    a(f's_add_u32 {sr(st1)}, {sr(st1)}, {sr(st2)}')
    a(f's_lshl_b32 {sr(st1)}, {sr(st1)}, 13')
    a(f's_add_u32 {sr(sWP1)}, {sr(st1)}, 32768')
    for b in range(2):
        for ks in range(4):
            a(f'v_xor_b32 {vr(vXa+4*b+ks)}, {32*ks}, {t[6]}')
            a(f'v_add_u32 {vr(vXa+4*b+ks)}, {sr(sXP1)}, {vr(vXa+4*b+ks)}')
            if b: a(f'v_add_u32 {vr(vXa+4*b+ks)}, 0x10000, {vr(vXa+4*b+ks)}')
        for cb in range(2):
            a(f'v_xor_b32 {vr(vWa+2*b+cb)}, {64*cb}, {t[7]}')
            a(f'v_add_u32 {vr(vWa+2*b+cb)}, {sr(sWP1)}, {vr(vWa+2*b+cb)}')
            if b: a(f'v_add_u32 {vr(vWa+2*b+cb)}, 0x10000, {vr(vWa+2*b+cb)}')
    a(f'v_lshlrev_b32 {vr(vG)}, 4, {vr(hh)}')
    a(f'v_add_u32 {vr(vG)}, 131072, {vr(vG)}')
    a(f'v_mov_b32 {vr(vGA)}, 0')
    a(f's_lshl_b32 {sr(st0)}, {sr(sH)}, 20')
    a(f's_lshl_b32 {sr(st1)}, {sr(sRt)}, 17')
    a(f's_add_u32 {sr(st0)}, {sr(st0)}, {sr(st1)}')
    a(f's_bfe_u32 {sr(st1)}, {sr(sWave)}, 0x10001')
    a(f's_lshl_b32 {sr(st1)}, {sr(st1)}, 16')
    a(f's_add_u32 {sr(st0)}, {sr(st0)}, {sr(st1)}')
    a(f's_and_b32 {sr(st1)}, {sr(sWave)}, 1')
    a(f's_cmp_lt_u32 {sr(sWave)}, 4')
    a(f's_cselect_b32 {sr(st2)}, 12, 11')
    a(f's_lshl_b32 {sr(st1)}, {sr(st1)}, {sr(st2)}')
    a(f's_add_u32 {sr(st0)}, {sr(st0)}, {sr(st1)}')
    a(f's_cselect_b32 {sr(st1)}, 0, 16384')
    a(f's_cmp_lt_u32 {sr(sWave)}, 4')
    a(f's_cselect_b32 {sr(st1)}, 0, 16384')
    a(f's_add_u32 {sr(sO)}, {sr(st0)}, {sr(st1)}')
    a(f's_cmp_lt_u32 {sr(sWave)}, 4')
    a(f's_cselect_b32 {sr(st1)}, 1, 4')
    a(f's_cselect_b32 {sr(st2)}, 2, 1')
    a(f's_lshl_b32 {sr(st1)}, {sr(st1)}, 10')
    a(f's_lshl_b32 {sr(st2)}, {sr(st2)}, 10')
    a(f's_add_u32 {sr(sO+1)}, {sr(sO)}, {sr(st1)}')
    a(f's_add_u32 {sr(sO+2)}, {sr(sO)}, {sr(st2)}')
    a(f's_add_u32 {sr(sO+3)}, {sr(sO+2)}, {sr(st1)}')

    def p1_reads(s, ks, fs):
        b = s & 1; f = FR + 28*fs; out = []
        def W(cb): return [(f'ds_read_b64_tr_b16 {vr(f+16+4*cb+2*h2,2)}, {vr(vWa+2*b+cb)} offset:{ks*2048+h2*512}', f'W{cb}_{fs}') for h2 in range(2)]
        def X(rb): return [(f'ds_read_b128 {vr(f+4*rb,4)}, {vr(vXa+4*b+ks)} offset:{rb*4096}', f'X{rb}_{fs}')]
        return W(0) + X(0) + W(1) + X(1) + X(2) + X(3)
    def p2_reads(s, ks, fs):
        b = s & 1; f = FR + 28*fs
        out = [(f'ds_read_b128 {vr(f,4)}, {vr(vXa+4*b+ks)}', f'X_{fs}')]
        for blk in range(6):
            grp, cb = blk >> 1, blk & 1
            for h2 in range(2):
                out.append((f'ds_read_b64_tr_b16 {vr(f+4+4*blk+2*h2,2)}, {vr(vWa+2*b+cb)} offset:{grp*8192+ks*2048+h2*512}', f'W{blk}_{fs}'))
            if blk == 1 and 'nodot' not in EXP: out.append((f'ds_read_b128 {vr(vGF+4*fs,4)}, {vr(vG)} offset:{(s&7)*128+ks*32}', f'G_{fs}'))
        if 'fewrd' in EXP: out = [o for o in out if o[1][:2] not in ('W2','W3','W4')]
        if 'b128' in EXP:
            o2 = []
            for o in out:
                if 'tr_b16' in o[0]:
                    if o2 and o2[-1][1] == o[1] and o2[-1][2]: o2.pop();
                    else:
                        import re
                        m = re.match(r'ds_read_b64_tr_b16 v\[(\d+):\d+\], (v\d+) offset:(\d+)', o[0])
                        o2.append((f'ds_read_b128 v[{m.group(1)}:{int(m.group(1))+3}], {vr(vXa+4*b+ks)} offset:{m.group(3)}', o[1], True)); o2.append(o2[-1]);
                        o2.pop()
                        continue
                else: o2.append((o[0], o[1], False))
            seen=set(); out=[]
            for o in o2:
                k=(o[1])
                if k in seen: continue
                seen.add(k); out.append((o[0],o[1]))
        return out
    def emit_rd(r): a(r[0]); lg.issue(r[1])
    def M(d, A, B, c0):
        return f'v_mfma_f32_32x32x16_bf16 {vr(d,16)}, {vr(A,4)}, {vr(B,4)}, {"0" if c0 else vr(d,16)}'

    carry = {}
    sp = os.environ.get('SP', '8080')
    SPREAD = {1: (int(sp[0]), int(sp[1])), 2: (int(sp[2]), int(sp[3]))}
    def phase(p, kwave, side):
        s0 = 0 if p == 1 else 8
        for s in range(s0, s0+8):
            for ks in range(4):
                fs = ks & 1; f = FR + 28*fs
                first = (s == s0 and ks == 0); last = (ks == 3)
                q = [('vm', it) for it in carry.pop((s, ks), [])] + list(side.get((s, ks), []))
                if last:
                    lg.drain()
                    if s + 1 < 16:
                        vm.need({f'dma{s+1}'})
                        a('s_barrier')
                    if STG == str(p): stamp(a, 2 + (s & 7), True)
                    if s + 2 < 16:
                        di = dma_items(s+2)
                        n0, n1 = SPREAD[p]
                        if s + 1 == 8 and p == 1: n0 = len(di)
                        q = [('vm', it) for it in di[:n0]] + q
                        carry[(s+1, 0)] = di[n0:n0+n1]; carry[(s+1, 1)] = di[n0+n1:]
                    ns, nks = s+1, 0
                else:
                    ns, nks = s, ks+1
                if ns >= 16 or (p == 1 and ns == 8): rd = []
                else: rd = (p1_reads if p == 1 else p2_reads)(ns, nks, 1-fs)
                mf = []
                if p == 1:
                    for rb in range(4):
                        for cb in range(2):
                            d = ACC + 16*(2*rb+cb); X = f+4*rb; W = f+16+4*cb
                            mf.append((M(d, W, X, first) if kwave else M(d, X, W, first), {f'X{rb}_{fs}', f'W{cb}_{fs}'}))
                    rper = 2
                else:
                    X = f
                    for blk in range(5): mf.append((M(ACC+16*blk, f+4+4*blk, X, first), {f'X_{fs}', f'W{blk}_{fs}'}))
                    mf.append((M(ACC+80, X, f+24, first), {f'X_{fs}', f'W5_{fs}'}))
                    rper = 3
                n = len(mf)
                qper = -(-len(q)//n) if q else 0
                for i, (m, need) in enumerate(mf):
                    lg.need(need)
                    a(m)
                    for r in rd[i*rper:(i+1)*rper]: emit_rd(r)
                    for kind, it in q[i*qper:(i+1)*qper]:
                        if kind == 'vm': emit_vm(it)
                        elif kind == 'vmneed': vm.need(it)
                        elif kind == 'lg': emit_rd(it)
                        elif kind == 'lgneed': lg.need(it)
                        else: a(it)
                    if p == 2 and 2 <= i < 6 and 'nodot' not in EXP:
                        if i == 2: lg.need({f'G_{fs}'})
                        a(f'v_dot2c_f32_bf16 {vr(vGA)}, {vr(X+i-2)}, {vr(vGF+4*fs+i-2)}')

    vm.need({'dma0'})
    a('s_barrier')
    stamp(a, 2)
    if STG == '1': stamp(a, 1, True)
    for r in p1_reads(0, 0, 0): emit_rd(r)
    side1 = {}
    for s_ in range(8): side1[(s_, 0)] = pf_at(s_)
    a(f's_cmp_lt_u32 {sr(sWave)}, 4')
    a('s_cbranch_scc0 f_vwave')
    sv_lg, sv_vm = list(lg.out), list(vm.out)
    phase(1, True, side1)
    a('s_branch f_p2')
    a.label('f_vwave')
    e_lg, e_vm = list(lg.out), list(vm.out)
    lg.out, vm.out = list(sv_lg), list(sv_vm)
    phase(1, False, side1)
    assert lg.out == e_lg and vm.out == e_vm
    a.label('f_p2')
    stamp(a, 3)
    a(f's_sub_u32 {sr(st0)}, {sr(sM)}, {sr(sXP1)}')
    a(f's_sub_u32 {sr(st1)}, 32768, {sr(sWP1)}')
    for i in range(8): a(f'v_add_u32 {vr(vXa+i)}, {sr(st0)}, {vr(vXa+i)}')
    for i in range(4): a(f'v_add_u32 {vr(vWa+i)}, {sr(st1)}, {vr(vWa+i)}')
    for r in p2_reads(8, 0, 0): emit_rd(r)
    a('s_nop 3')
    dst = {6: BIG, 7: BIG+8, 0: BIG+16, 1: BIG+24, 2: 96, 3: 104, 4: 112, 5: 120}
    for blk in (6, 7, 0, 1, 2, 3, 4, 5):
        for q_ in range(8):
            a(f'v_cvt_pk_bf16_f32 {vr(dst[blk]+q_)}, {vr(ACC+16*blk+2*q_)}, {vr(ACC+16*blk+2*q_+1)}')
    stamp(a, 4)
    if STG == '2': stamp(a, 1, True)
    side2 = {}
    stores = []
    for blk in (2, 3, 4, 5, 6, 7, 0, 1):
        rb, cb = blk >> 1, blk & 1
        for g in range(2):
            if 'nost' not in EXP: stores.append(('vm', ([f's_add_u32 {sr(st1)}, {sr(sO+2*cb+g)}, {(rb>>1)*32768 + (rb&1)*8192}',
                                   f'buffer_store_dwordx4 {vr(dst[blk]+4*g,4)}, {vr(vL16)}, {sr(sWS,4)}, {sr(st1)} offen{STM}'], 'p1st')))
    sched = {8: 3, 9: 3, 10: 3, 11: 3, 12: 2, 13: 2}
    k_ = 0
    for st_, cnt in sched.items():
        lst = stores[k_:k_+cnt]; k_ += cnt
        side2[(st_, 0)] = lst[:(cnt+1)//2]; side2[(st_, 1)] = lst[(cnt+1)//2:]
    for s_ in range(8, 16): side2[(s_, 0)] = pf_at(s_) + side2.get((s_, 0), [])
    ID = 104
    c0, c1, cD = 217, 252, 254
    idq = [('v', f'v_lshlrev_b32 {vr(cD)}, 2, {vr(hh)}'), ('v', f'v_sub_u32 {vr(cD)}, {vr(nn)}, {vr(cD)}'),
           ('v', f'v_mov_b32 {vr(c0)}, 0x3f80'), ('v', f'v_mov_b32 {vr(c1)}, 0x3f800000')]
    for g in range(2):
        for q_ in range(4):
            k_lo = 16*g + 8*(q_ >> 1) + 2*(q_ & 1)
            idq += [('v', f'v_cmp_eq_u32 s[64:65], {k_lo}, {vr(cD)}'), ('v', f'v_cmp_eq_u32 s[66:67], {k_lo+1}, {vr(cD)}'),
                    ('v', f'v_mov_b32 {vr(ID+4*g+q_)}, 0'), ('v', 's_nop 0'),
                    ('v', f'v_cndmask_b32 {vr(ID+4*g+q_)}, {vr(ID+4*g+q_)}, {vr(c0)}, s[64:65]'),
                    ('v', f'v_cndmask_b32 {vr(ID+4*g+q_)}, {vr(ID+4*g+q_)}, {vr(c1)}, s[66:67]')]
    n = len(idq); per = -(-n//6)
    keys = [(11, 2), (12, 2), (13, 2), (14, 2), (15, 0), (15, 1)]
    for i, k in enumerate(keys): side2[k] = idq[i*per:(i+1)*per]
    pub = ['\n'.join([f's_lshl_b32 s68, {sr(sH)}, 3', 'v_mov_b32 v255, s68', f's_cmp_eq_u32 {sr(sWave)}, 1', 's_cbranch_scc0 f_noinv',
                      'buffer_inv sc1', 'f_noinv:', f's_cmp_eq_u32 {sr(sWave)}, 0', 's_cbranch_scc0 f_noat', 'v_mov_b32 v253, 1',
                      's_mov_b64 s[68:69], exec', 's_mov_b64 exec, 1', 'buffer_atomic_add v253, v255, s[4:7], 0 offen sc1',
                      's_mov_b64 exec, s[68:69]', 'f_noat:'])]
    side2[(15, 0)] = [('v', pub[0])] + side2.get((15, 0), [])
    phase(2, None, side2)
    stamp(a, 5)
    QK = ACC+64; VA = ACC+80
    QF, KF, VF, WP = 112, 116, 120, BIG
    MT = 160; PQP = 242
    a(f'v_bfe_u32 {vr(vt)}, {l}, 2, 2')
    a(f'v_lshl_add_u32 {vr(vt)}, {vr(hh)}, 2, {vr(vt)}')
    a(f'v_lshlrev_b32 {vr(vt)}, 5, {vr(vt)}')
    a(f'v_and_b32 {vr(vt+1)}, 3, {l}')
    a(f'v_lshl_add_u32 {vr(vt)}, {vr(vt+1)}, 3, {vr(vt)}')
    a(f'v_add_u32 {vr(vt)}, {LDS_WP}, {vr(vt)}')
    a(f'ds_read_b64_tr_b16 {vr(WP,2)}, {vr(vt)}')
    a(f'ds_read_b64_tr_b16 {vr(WP+2,2)}, {vr(vt)} offset:256')
    a(f'v_cmp_lt_u32 vcc, 15, {vr(nn)}')
    a(f'v_mov_b32 {vr(vt)}, 0x80008000')
    a(f'v_mov_b32 {vr(vt+1)}, 0')
    a(f'v_cndmask_b32 {vr(vt)}, {vr(vt+1)}, {vr(vt)}, vcc')
    a('s_waitcnt lgkmcnt(0)')
    for q_ in range(4): a(f'v_xor_b32 {vr(WP+q_)}, {vr(WP+q_)}, {vr(vt)}')
    a('s_nop 3')
    for q_ in range(4):
        a(f'v_cvt_pk_bf16_f32 {vr(QF+q_)}, {vr(QK+2*q_)}, {vr(QK+2*q_+1)}')
        a(f'v_cvt_pk_bf16_f32 {vr(KF+q_)}, {vr(QK+8+2*q_)}, {vr(QK+8+2*q_+1)}')
    PQ, PK = BIG+8, QK
    a('s_nop 1')
    mfma(a, PQ, WP, QF, 'zero'); mfma(a, PK, WP, KF, 'zero')
    a(f's_mov_b32 s70, {hex(f2u(QSCALE))}'); a(f's_mov_b32 s71, {hex(f2u(QSCALE))}')
    for db in range(4):
        d = ACC+16*db
        for r in range(8): a(f'v_pk_mul_f32 {vr(d+2*r,2)}, {vr(d+2*r,2)}, s[70:71]')
        for g in range(2):
            for q_ in range(4):
                a(f'v_cvt_pk_bf16_f32 {vr(128+4*(2*db+g)+q_)}, {vr(d+8*g+2*q_)}, {vr(d+8*g+2*q_+1)}')
    stamp(a, 6)
    a(f'v_and_b32 {vr(vt)}, 27, {vr(nn)}')
    a(f'v_cmp_eq_u32 vcc, 16, {vr(vt)}')
    a(f'v_mov_b32 {vr(vt+1)}, 0x3f803f80')
    for q_ in range(8): a(f'v_cvt_pk_bf16_f32 {vr(VF+q_)}, {vr(VA+2*q_)}, {vr(VA+2*q_+1)}')
    for q_ in range(8): a(f'v_cndmask_b32 {vr(VF+q_)}, {vr(VF+q_)}, {vr(vt+1)}, vcc')
    L2E = 0x3fb8aa3b
    a(f's_mov_b32 s69, {hex(L2E)}')
    chains = [(PQ, MT), (PQ+8, MT+2), (PK, MT+4), (PK+8, MT+6)]
    gat = MT+8
    def each(fn):
        for b, m in chains: fn(b, m)
    each(lambda b, m: a(f'v_max3_f32 {vr(m)}, {vr(b)}, {vr(b+1)}, {vr(b+2)}'))
    each(lambda b, m: a(f'v_max3_f32 {vr(m)}, {vr(m)}, {vr(b+3)}, {vr(b+4)}'))
    each(lambda b, m: a(f'v_max3_f32 {vr(m)}, {vr(m)}, {vr(b+5)}, {vr(b+6)}'))
    each(lambda b, m: a(f'v_max_f32 {vr(m)}, {vr(m)}, {vr(b+7)}'))
    each(lambda b, m: a(f'v_mov_b32 {vr(m+1)}, {vr(m)}'))
    a(f'v_mov_b32 {vr(gat)}, {vr(vGA)}')
    a('s_nop 0')
    each(lambda b, m: a(f'v_permlane32_swap_b32 {vr(m)}, {vr(m+1)}'))
    a(f'v_permlane32_swap_b32 {vr(vGA)}, {vr(gat)}')
    a('s_nop 0')
    each(lambda b, m: a(f'v_max_f32 {vr(m)}, {vr(m)}, {vr(m+1)}'))
    a(f'v_add_f32 {vr(vGA)}, {vr(vGA)}, {vr(gat)}')
    each(lambda b, m: a(f'v_mul_f32 {vr(m)}, 0xbfb8aa3b, {vr(m)}'))
    a(f'v_mul_f32 {vr(vGA)}, 0xbfb8aa3b, {vr(vGA)}')
    for b, m in chains:
        for r in range(8): a(f'v_fma_f32 {vr(b+r)}, {vr(b+r)}, s69, {vr(m)}')
    a(f'v_exp_f32 {vr(vGA)}, {vr(vGA)}')
    for b, m in chains:
        for r in range(8): a(f'v_exp_f32 {vr(b+r)}, {vr(b+r)}')
    a(f'v_add_f32 {vr(vGA)}, 1.0, {vr(vGA)}')
    each(lambda b, m: a(f'v_add_f32 {vr(m)}, {vr(b)}, {vr(b+1)}'))
    for r in range(2, 8): each(lambda b, m: a(f'v_add_f32 {vr(m)}, {vr(m)}, {vr(b+r)}'))
    each(lambda b, m: a(f'v_mov_b32 {vr(m+1)}, {vr(m)}'))
    a(f'v_rcp_f32 {vr(vGA)}, {vr(vGA)}')
    a('s_nop 0')
    each(lambda b, m: a(f'v_permlane32_swap_b32 {vr(m)}, {vr(m+1)}'))
    a('s_nop 0')
    each(lambda b, m: a(f'v_add_f32 {vr(m)}, {vr(m)}, {vr(m+1)}'))
    each(lambda b, m: a(f'v_rcp_f32 {vr(m)}, {vr(m)}'))
    a('s_nop 0')
    for b, m in chains:
        for r in range(8): a(f'v_mul_f32 {vr(b+r)}, {vr(m)}, {vr(b+r)}')
    a(f's_cmp_lg_u32 {sr(sWave)}, 0')
    a('s_cbranch_scc1 f_nopoll')
    a('buffer_load_dword v224, v255, s[4:7], 0 offen sc1')
    a.label('f_nopoll')
    for g in range(2):
        for q_ in range(4):
            a(f'v_cvt_pk_bf16_f32 {vr(PK+8*g+q_)}, {vr(PK+8*g+2*q_)}, {vr(PK+8*g+2*q_+1)}')
    TT = ACC+0
    a('s_nop 0')
    mfma(a, TT, PK, ID, 'zero'); mfma(a, TT, PK+8, ID+4)
    for g in range(2):
        for q_ in range(4):
            a(f'v_cvt_pk_bf16_f32 {vr(PQP+4*g+q_)}, {vr(PQ+8*g+2*q_)}, {vr(PQ+8*g+2*q_+1)}')
    a('s_nop 7'); a('s_nop 3')
    for g in range(2):
        for q_ in range(4):
            a(f'v_cvt_pk_bf16_f32 {vr(TT+8*g+q_)}, {vr(TT+8*g+2*q_)}, {vr(TT+8*g+2*q_+1)}')
    KZ = ACC+16
    a('s_nop 1')
    mfma(a, KZ, TT, VF, 'zero'); mfma(a, KZ, TT+8, VF+4)
    a(f'v_add_u32 {vr(vt)}, {sr(sM)}, {vr(vL16)}')
    a(f'v_and_b32 {vr(MT)}, 3, {vr(vTid)}')
    a(f'v_lshlrev_b32 {vr(MT)}, 10, {vr(MT)}')
    a(f'v_lshrrev_b32 {vr(MT+1)}, 2, {vr(vTid)}')
    a(f'v_lshl_add_u32 {vr(MT)}, {vr(MT+1)}, 4, {vr(MT)}')
    a(f's_lshl_b32 {sr(st0)}, {sr(sH)}, 15')
    a(f's_lshl_b32 {sr(st1)}, {sr(sRt)}, 12')
    a(f's_add_u32 {sr(st0)}, {sr(st0)}, {sr(st1)}')
    a(f's_add_u32 {sr(st0)}, {sr(st0)}, {WS_KVP}')
    a(f'v_lshlrev_b32 {vr(MT+2)}, 4, {vr(vTid)}')
    a('s_nop 7'); a('s_nop 1')
    for q_ in range(4):
        a(f'ds_write_b128 {vr(vt)}, {vr(KZ+4*q_,4)} offset:{q_*1024}')
    a(f'v_mov_b32 {vr(vt)}, 131072'); a(f'v_mov_b32 {vr(vt+1)}, 0')
    a(f'ds_write_b32 {vr(vt)}, {vr(vt+1)}')
    a(f's_cmp_lg_u32 {sr(sWave)}, 0')
    a('s_cbranch_scc1 f_sync_done')
    stamp(a, 1)
    a('s_mov_b32 s66, 40000')
    a.label('f_spin')
    a('s_waitcnt vmcnt(0)')
    a('v_readfirstlane_b32 s67, v224')
    a('s_cmp_ge_u32 s67, 8')
    a('s_cbranch_scc1 f_spin_out')
    a('buffer_load_dword v224, v255, s[4:7], 0 offen sc1')
    a('s_sub_u32 s66, s66, 1')
    a('s_cmp_lg_u32 s66, 0')
    a('s_cbranch_scc1 f_spin')
    a('s_waitcnt vmcnt(0)')
    a.label('f_spin_out')
    stamp(a, 4)
    if 'late' in EXP: a('buffer_inv sc1')
    a.label('f_sync_done')
    a('s_waitcnt lgkmcnt(0)')
    a('s_barrier')
    a(f's_cmp_ge_u32 {sr(sWave)}, 4')
    a('s_cbranch_scc1 f_nored')
    for wv in range(8):
        a(f'ds_read_b128 {vr(ACC+32+4*wv,4)}, {vr(MT)} offset:{wv*4096}')
    a('s_waitcnt lgkmcnt(0)')
    for stp in (4, 2, 1):
        for wv in range(stp):
            for e in range(2):
                a(f'v_pk_add_f32 {vr(ACC+32+4*wv+2*e,2)}, {vr(ACC+32+4*wv+2*e,2)}, {vr(ACC+32+4*(wv+stp)+2*e,2)}')
    a(f'buffer_store_dwordx4 {vr(ACC+32,4)}, {vr(MT+2)}, {sr(sWS,4)}, {sr(st0)} offen{STM}')
    a.label('f_nored')
    a('v_mov_b32 v215, v212'); a('v_mov_b32 v216, v203'); a('v_mov_b32 v217, v200'); a('v_mov_b32 v214, v201')
    stamp(a, 7)
    a('s_waitcnt vmcnt(1)')
    a('s_barrier')
    stamp(a, 8)
    import f_b
    f_b.gen_attn(a)
    rstamp(a, 101)
    stamp_flush(a, 0, 12, sWS, sWave)
    a.label('f_end')
    a('s_endpgm')
    kernel_desc(a, name, 256)
    return name
```

```python
from asmlib import *

import os
EXP=os.environ.get('EXP','')
PFD=int(os.environ.get('PFD','6'))
CTXM={'a':' nt','b':' sc1','f':' sc1 nt'}.get(os.environ.get('CTXM',''),'')
def gen_attn(a):
    sWS = 28
    sWave, sH, sJ, sTile, sRb = 36, 37, 38, 39, 47
    sT, sTA, sIsB, sWl, sKg, sMK, sCnt, sFb, sKg0 = 8, 9, 10, 11, 12, 13, 14, 15, 16
    st0, st1, st2 = 17, 18, 19
    sMsk = 20
    O = 0; S = [64, 96]; Q = 128; NEGM = 160; F = [176, 192]
    vKa, vVa = 208, 209
    vL = 210
    vDa, vDb, vL16, vG = 212, 213, 214, 215
    vTid, vLane = 216, 217
    vt = 218
    LDS_FLAG = 131072; LDS_KZ = 131072 + 256
    a(f's_lshr_b32 {sr(sIsB)}, {sr(sWave)}, 2')
    a(f's_and_b32 {sr(sWl)}, {sr(sWave)}, 3')
    a(f's_sub_u32 {sr(st0)}, 15, {sr(sJ)}')
    a(f's_lshl_b32 {sr(sT)}, {sr(sTile)}, 1')
    a(f's_add_u32 {sr(sT)}, {sr(sT)}, 2')
    a(f's_lshl_b32 {sr(sTA)}, {sr(st0)}, 1')
    a(f's_add_u32 {sr(sTA)}, {sr(sTA)}, 2')
    a(f's_lshl_b32 {sr(sKg0)}, {sr(sH)}, 20')
    a(f's_lshl_b32 {sr(st0)}, {sr(sWl)}, 12')
    a(f's_add_u32 {sr(sKg0)}, {sr(sKg0)}, {sr(st0)}')
    a(f's_mov_b32 {sr(sFb)}, 0')
    sK31, sV31 = 41, 42
    a(f's_add_u32 {sr(sK31)}, {sr(sKg0)}, {31*32768}')
    a(f's_add_u32 {sr(sV31)}, {sr(sK31)}, 16384')
    PH = 242
    a(f'v_and_b32 {vr(vt+1)}, 31, {vr(vLane)}')
    a(f'v_lshrrev_b32 {vr(vt+3)}, 5, {vr(vLane)}')
    a(f'v_lshlrev_b32 {vr(vt+3)}, 2, {vr(vt+3)}')
    a(f'v_sub_u32 {vr(vDa)}, {vr(vt+1)}, {vr(vt+3)}')
    a(f's_lshl_b32 {sr(st0)}, {sr(sWl)}, 5')
    a(f'v_add_u32 {vr(vDa)}, {sr(st0)}, {vr(vDa)}')
    a(f'v_subrev_u32 {vr(vDb)}, 64, {vr(vDa)}')
    for r in range(16): a(f'v_mov_b32 {vr(NEGM+r)}, 0')

    def dma4(soff_reg, soff_add, m0_reg, m0_add):
        a(f's_add_u32 m0, {sr(m0_reg)}, {m0_add}')
        a(f's_add_u32 {sr(st2)}, {sr(soff_reg)}, {soff_add}')
        for i in range(4):
            a(f'buffer_load_dwordx4 {vr(vL16)}, {sr(sWS,4)}, {sr(st2)} offen offset:{i*1024} lds')
    def prologue_dma():
        a(f's_lshl_b32 {sr(sMK)}, {sr(sWl)}, 12')
        dma4(sKg0, 0, sMK, 0)
        dma4(sKg0, 32768, sMK, 32768)
        dma4(sKg0, 16384, sMK, 16384)
        dma4(sKg0, 32768+16384, sMK, 32768+16384)
        dma4(sKg0, 65536, sMK, 65536)
        dma4(sKg0, 65536+16384, sMK, 65536+16384)
        dma4(sKg0, 98304, sMK, 98304)
        a(f's_add_u32 {sr(sKg)}, {sr(sKg0)}, {4*32768}')
    sPh = 40
    a(f's_lshl_b32 {sr(sPh)}, {sr(sIsB)}, 4')
    sStep = 44
    a(f's_cmp_ge_u32 {sr(sT)}, 26')
    a(f's_cselect_b32 {sr(sStep)}, 1, 2')
    a.label('fa_restart')
    a(f's_cmp_eq_u32 {sr(sIsB)}, 0')
    a('s_cbranch_scc1 fa_ra')
    prologue_dma()
    a.label('fa_ra')
    a('s_waitcnt vmcnt(16)')
    a('s_barrier')
    a.label('fa_start')
    stamp(a,9)

    def M(d, A, B, C):
        a(f'v_mfma_f32_32x32x16_bf16 {vr(d,16)}, {vr(A,4)}, {vr(B,4)}, {vr(C,16)}')
    def kread(f, addr, kb, t): return f'ds_read_b128 {vr(f,4)}, {vr(addr)} offset:{kb*8192+t*1024}'
    def vread(f, addr, s, db): return f'ds_read_b128 {vr(f,4)}, {vr(addr)} offset:{16384+s*4096+db*1024}'

    def chunk_ops(Sb, kb, qt, vDm):
        b = Sb + 16*kb + 4*qt; b8 = Sb + 16*kb + 8*(qt >> 1); d = b8 + 2*(qt & 1)
        g = [[], [], [], []]
        g[0] += [f'v_exp_f32 {vr(b)}, {vr(b)}', f'v_exp_f32 {vr(b+1)}, {vr(b+1)}']
        g[1] += [f'v_exp_f32 {vr(b+2)}, {vr(b+2)}', f'v_exp_f32 {vr(b+3)}, {vr(b+3)}']
        if vDm is not None:
            for e in range(4):
                g[e >> 1].append(f'v_cmp_le_i32 {sr(sMsk+2*e,2)}, {32*kb+8*qt+e}, {vr(vDm)}')
            for e in range(4):
                g[2].append(f'v_cndmask_b32 {vr(b+e)}, 0, {vr(b+e)}, {sr(sMsk+2*e,2)}')
        if 'pkadd' in EXP:
            g[2] += [f'v_pk_add_f32 {vr(vL,2)}, {vr(vL,2)}, {vr(b,2)}', f'v_pk_add_f32 {vr(vL,2)}, {vr(vL,2)}, {vr(b+2,2)}']
        elif 'bal2' in EXP and vDm is None:
            E = lambda e: f'v_exp_f32 {vr(b+e)}, {vr(b+e)}'
            A = lambda e: f'v_add_f32 {vr(vL+(e&1))}, {vr(vL+(e&1))}, {vr(b+e)}'
            g = [[E(0)], [E(1), A(0)], [E(2), A(1), f'v_cvt_pk_bf16_f32 {vr(d)}, {vr(b)}, {vr(b+1)}'], [E(3), A(2)],
                 [A(3), f'v_cvt_pk_bf16_f32 {vr(d+1)}, {vr(b+2)}, {vr(b+3)}']]
            return g
        elif 'bal' in EXP and vDm is None:
            g = [[f'v_exp_f32 {vr(b)}, {vr(b)}', f'v_exp_f32 {vr(b+1)}, {vr(b+1)}'],
                 [f'v_exp_f32 {vr(b+2)}, {vr(b+2)}', f'v_add_f32 {vr(vL)}, {vr(vL)}, {vr(b)}', f'v_add_f32 {vr(vL+1)}, {vr(vL+1)}, {vr(b+1)}'],
                 [f'v_exp_f32 {vr(b+3)}, {vr(b+3)}', f'v_add_f32 {vr(vL)}, {vr(vL)}, {vr(b+2)}', f'v_cvt_pk_bf16_f32 {vr(d)}, {vr(b)}, {vr(b+1)}'],
                 [f'v_add_f32 {vr(vL+1)}, {vr(vL+1)}, {vr(b+3)}', f'v_cvt_pk_bf16_f32 {vr(d+1)}, {vr(b+2)}, {vr(b+3)}']]
            if 'noexp' in EXP: g = [[o for o in x if 'exp' not in o] for x in g]
            if 'novalu' in EXP: g = [[], [], [], []]
            return g
        else:
            g[2] += [f'v_add_f32 {vr(vL+(e&1))}, {vr(vL+(e&1))}, {vr(b+e)}' for e in range(4)]
        g[3] += [f'v_cvt_pk_bf16_f32 {vr(d)}, {vr(b)}, {vr(b+1)}', f'v_cvt_pk_bf16_f32 {vr(d+1)}, {vr(b+2)}, {vr(b+3)}']
        return g

    for r in range(64): a(f'v_mov_b32 {vr(O+r)}, 0')
    a(f'v_mov_b32 {vr(vL)}, 0'); a(f'v_mov_b32 {vr(vL+1)}, 0')
    a(f'v_mov_b32 {vr(vKa)}, {vr(vL16)}')
    for i in range(4): a(kread(F[0]+4*i, vKa, 0, i))
    for i in range(4): a(kread(F[1]+4*i, vKa, 0, 4+i))
    for g in range(4):
        kb, t0 = g >> 1, 4*(g & 1)
        a('s_waitcnt lgkmcnt(4)' if g < 3 else 's_waitcnt lgkmcnt(0)')
        for i in range(4):
            d = S[0] + 16*kb
            M(d, F[g & 1]+4*i, Q+4*(t0+i), NEGM if (t0+i) == 0 else d)
            if g < 2: a(kread(F[g & 1]+4*i, vKa, 1, t0+i))
    a(f'v_mov_b32 {vr(vVa)}, {vr(vKa)}')
    a(f'v_add_u32 {vr(vKa)}, 32768, {vr(vKa)}')
    for i in range(4): a(kread(F[0]+4*i, vKa, 0, i))
    for i in range(4): a(vread(F[1]+4*i, vVa, 0, i))
    a(f's_sub_u32 {sr(st0)}, {sr(sT)}, 2')
    a(f's_lshl_b32 {sr(st0)}, {sr(st0)}, 6')
    a(f'v_add_u32 {vr(vt)}, {sr(st0)}, {vr(vDa)}')
    a('s_nop 4')
    for qt in range(4):
        for gl in chunk_ops(S[0], 0, qt, vt):
            for op in gl: a(op)
            a('s_nop 1')
    a(f's_sub_u32 {sr(sCnt)}, {sr(sT)}, 4')
    a(f's_lshr_b32 {sr(sCnt)}, {sr(sCnt)}, 1')
    a(f's_cmp_eq_u32 {sr(sT)}, 2')
    a('s_cbranch_scc1 fa_V2')

    ool = []
    def b_dma():
        a(f's_add_u32 {sr(st1)}, {sr(sMK)}, 98304')
        a(f's_and_b32 {sr(st1)}, {sr(st1)}, 0x1ffff')
        a(f's_sub_u32 {sr(st0)}, {sr(sKg)}, 16384')
        a(f's_min_u32 {sr(st0)}, {sr(st0)}, {sr(sV31)}')
        dma4(st0, 0, st1, 16384)
        a(f's_min_u32 {sr(st0)}, {sr(sKg)}, {sr(sK31)}')
        dma4(st0, 0, sMK, 0)
        a(f's_add_u32 {sr(st0)}, {sr(sKg)}, 16384')
        a(f's_min_u32 {sr(st0)}, {sr(st0)}, {sr(sV31)}')
        dma4(st0, 0, sMK, 16384)
        a(f's_add_u32 {sr(st0)}, {sr(sKg)}, 32768')
        a(f's_min_u32 {sr(st0)}, {sr(st0)}, {sr(sK31)}')
        dma4(st0, 0, sMK, 32768)
        a(f's_add_u32 {sr(sKg)}, {sr(sKg)}, 65536')
        a(f's_add_u32 {sr(sMK)}, {sr(sMK)}, 65536')
        a(f's_and_b32 {sr(sMK)}, {sr(sMK)}, 0x1ffff')
    def sync_point(tag):
        a(f's_cmp_eq_u32 {sr(sIsB)}, 0')
        a(f's_cbranch_scc0 fa_bp_{tag}')
        a.label(f'fa_bpr_{tag}')
        a('s_waitcnt lgkmcnt(0)')
        a('s_barrier')
        a(f's_cbranch_scc0 fa_bd_{tag}')
        a.label(f'fa_bdr_{tag}')
        ool.append(tag)
    def emit_ool():
        for tag in ool:
            a.label(f'fa_bp_{tag}')
            a('s_waitcnt vmcnt(0)')
            a(f's_branch fa_bpr_{tag}')
            a.label(f'fa_bd_{tag}')
            b_dma()
            a(f's_branch fa_bdr_{tag}')
    def ld_sync(nvm):
        a(f's_waitcnt vmcnt({nvm})')
        a('s_barrier')
        b_dma()

    def iteration(par, tag, mask_cur, mask_next, do_qk, next_k, next_v, entry):
        cur, nxt = S[par], S[1-par]
        out = list(entry)
        carry = []
        def wait(setname):
            idx = max([i for i, x in enumerate(out) if x == setname], default=-1)
            if idx < 0: return
            n = len(out) - 1 - idx
            a(f's_waitcnt lgkmcnt({n})')
            del out[:idx+1]
        for g in range(8):
            isqk = (g % 2 == 0)
            fs = g & 1; f = F[fs]
            late_sync = (g == 6 and tag in ('e', 'v2'))
            late_rd = []
            adr = []
            if g == 5 and (next_k or next_v):
                adr = [f'v_mov_b32 {vr(vt+1)}, {vr(vKa)}', f'v_add_u32 {vr(vKa)}, 32768, {vr(vKa)}', f'v_and_b32 {vr(vKa)}, 0x1ffff, {vr(vKa)}']
            if g == 7 and (next_k or next_v):
                a(f'v_mov_b32 {vr(vVa)}, {vr(vt+1)}')
            if g < 4: ch = chunk_ops(cur, 1, g, vDm(mask_cur))
            elif do_qk: ch = chunk_ops(nxt, 0, g-4, vDm(mask_next))
            else: ch = None
            if ch is not None:
                ch = [list(x) for x in ch]
                ch[0] = carry + ch[0]; carry = []
                if len(ch) == 5:
                    if g == 7 or (g == 3 and not do_qk) : ch[3] = ch[3] + ch[4]
                    else: carry = ch[4]
                    ch = ch[:4]
            else: assert not carry
            active = do_qk or not isqk
            if active: wait(f'F{fs}')
            for i in range(4):
                rd = None
                if isqk:
                    if do_qk:
                        kb, t0 = g >> 2, 4*((g >> 1) & 1)
                        d = nxt + 16*kb
                        M(d, f+4*i, Q+4*(t0+i), NEGM if (t0+i) == 0 else d)
                        if g < 6:
                            g2 = g+2; rd = kread(f+4*i, vKa, g2 >> 2, 4*((g2 >> 1) & 1)+i)
                        elif next_k: rd = kread(f+4*i, vKa, 0, i)
                else:
                    s = g >> 1
                    M(O+16*i, f+4*i, cur+16*(s >> 1)+8*(s & 1), O+16*i)
                    if g < 7: rd = vread(f+4*i, vVa, s+1, i)
                    elif next_v: rd = vread(f+4*i, vVa, 0, i)
                if rd and late_sync: late_rd.append(rd)
                elif rd:
                    if 'nods' not in EXP or tag not in ('e','o'): a(rd)
                    out.append(f'F{fs}')
                if ch:
                    for op in ch[i]: a(op)
                    if not active and i < 3: a('s_nop 0')
                if adr and i >= 1: a(adr[i-1])
            if late_sync:
                sync_point(tag)
                del out[:]
                for rd in late_rd:
                    a(rd); out.append(f'F{fs}')
        return out
    def vDm(m): return {None: None, 'a': vDa, 'b': vDb}[m]
    full = ['F0']*4 + ['F1']*4
    a.label('fa_loop')
    a(f's_cmp_lt_u32 {sr(sPh)}, 12')
    a('s_cbranch_scc1 fa_side')
    a.label('fa_loop_b')
    o = iteration(0, 'e', None, None, True, True, True, full); assert o == full, o
    a(f's_cmp_eq_u32 {sr(sCnt)}, 0')
    a('s_cbranch_scc1 fa_V1')
    o = iteration(1, 'o', None, None, True, True, True, full); assert o == full
    a(f's_sub_u32 {sr(sCnt)}, {sr(sCnt)}, 1')
    a('s_branch fa_loop')
    a.label('fa_V1')
    o = iteration(1, 'v1', None, 'a', True, True, True, full); assert o == full
    a.label('fa_V2')
    o = iteration(0, 'v2', 'a', 'b', True, False, True, full); assert o == ['F1']*4, o
    o = iteration(1, 'v3', 'b', None, False, False, False, o); assert o == [], o
    stamp(a,10)
    def lcheck(tag):
        a(f'v_add_f32 {vr(vL)}, {vr(vL)}, {vr(vL+1)}')
        a(f'v_mov_b32 {vr(vL+1)}, {vr(vL)}')
        a('s_nop 1')
        a(f'v_permlane32_swap_b32 {vr(vL)}, {vr(vL+1)}')
        a('s_nop 1')
        a(f'v_add_f32 {vr(vL)}, {vr(vL)}, {vr(vL+1)}')
        a(f's_cmp_lg_u32 {sr(sFb)}, 0')
        a(f's_cbranch_scc1 fa_ok{tag}')
        a(f'v_mov_b32 {vr(vt)}, 0x21800000')
        a(f'v_mov_b32 {vr(vt+1)}, 0x5d800000')
        a(f'v_cmp_ge_f32 {sr(sMsk,2)}, {vr(vL)}, {vr(vt)}')
        a(f'v_cmp_le_f32 {sr(sMsk+2,2)}, {vr(vL)}, {vr(vt+1)}')
        a('s_nop 1')
        a(f's_and_b64 {sr(sMsk,2)}, {sr(sMsk,2)}, {sr(sMsk+2,2)}')
        a(f's_not_b64 {sr(sMsk,2)}, {sr(sMsk,2)}')
        a(f's_cmp_eq_u64 {sr(sMsk,2)}, 0')
        a(f's_cbranch_scc1 fa_ok{tag}')
        a(f'v_mov_b32 {vr(vt)}, {LDS_FLAG}')
        a(f'v_mov_b32 {vr(vt+1)}, 1')
        a(f'ds_write_b32 {vr(vt)}, {vr(vt+1)}')
        a.label(f'fa_ok{tag}')
    def epi_store():
        a(f'v_rcp_f32 {vr(vL)}, {vr(vL)}')
        a(f'v_sub_f32 {vr(vt)}, 1.0, {vr(vG)}')
        a(f'v_mul_f32 {vr(vL)}, {vr(vL)}, {vr(vt)}')
        a(f's_mul_i32 {sr(st0)}, {sr(sRb)}, {288*1024}')
        a(f's_lshl_b32 {sr(st1)}, {sr(sH)}, 13')
        a(f's_add_u32 {sr(st0)}, {sr(st0)}, {sr(st1)}')
        a(f's_add_u32 {sr(st0)}, {sr(st0)}, {WS_CTX}')
        for db in range(4):
            d = O + 16*db
            for r in range(16): a(f'v_mul_f32 {vr(d+r)}, {vr(vL)}, {vr(d+r)}')
            for g in range(2):
                for q in range(4):
                    a(f'v_cvt_pk_bf16_f32 {vr(d+8*g+q)}, {vr(d+8*g+2*q)}, {vr(d+8*g+2*q+1)}')
            if db == 2: a(f's_add_u32 {sr(st0)}, {sr(st0)}, 4096')
            for g in range(2):
                a(f'buffer_store_dwordx4 {vr(d+8*g,4)}, {vr(vL16)}, {sr(sWS,4)}, {sr(st0)} offen offset:{((2*db+g)&3)*1024}{CTXM}')
    lcheck('')
    a(f's_cmp_eq_u32 {sr(sIsB)}, 0')
    a('s_cbranch_scc1 fa_fin')
    epi_store()
    ld_sync(8)
    a(f's_sub_u32 {sr(sCnt)}, {sr(sTA)}, {sr(sT)}')
    a(f's_lshr_b32 {sr(sCnt)}, {sr(sCnt)}, 1')
    a(f's_sub_u32 {sr(sCnt)}, {sr(sCnt)}, 1')
    a(f's_cmp_eq_u32 {sr(sCnt)}, 0')
    a('s_cbranch_scc1 fa_fin')
    a.label('fa_ld')
    ld_sync(0)
    a(f's_sub_u32 {sr(sCnt)}, {sr(sCnt)}, 1')
    a(f's_cmp_lg_u32 {sr(sCnt)}, 0')
    a('s_cbranch_scc1 fa_ld')
    a.label('fa_fin')
    a('s_waitcnt vmcnt(0) lgkmcnt(0)')
    a('s_barrier')
    a(f's_cmp_lg_u32 {sr(sFb)}, 0')
    a('s_cbranch_scc1 fa_epi')
    a(f'v_mov_b32 {vr(vt)}, {LDS_FLAG}')
    a(f'ds_read_b32 {vr(vt+1)}, {vr(vt)}')
    a('s_waitcnt lgkmcnt(0)')
    a(f'v_readfirstlane_b32 {sr(st0)}, {vr(vt+1)}')
    a(f's_cmp_eq_u32 {sr(st0)}, 0')
    a('s_cbranch_scc1 fa_epi')
    a(f's_mov_b32 {sr(sFb)}, 1')
    vM = vt+2; vDg = vt+3; vNI = vt+4
    a(f'v_mov_b32 {vr(vM)}, 0xff7fffff')
    a(f'v_mov_b32 {vr(vNI)}, 0xff7fffff')
    a(f's_sub_u32 {sr(st0)}, {sr(sT)}, 2')
    a(f's_lshl_b32 {sr(st0)}, {sr(st0)}, 6')
    a(f'v_add_u32 {vr(vDg)}, {sr(st0)}, {vr(vDa)}')
    a(f's_lshl_b32 {sr(st1)}, {sr(sH)}, 20')
    a(f's_mov_b32 {sr(sCnt)}, {sr(sT)}')
    a.label('fa_mx')
    for kb in range(2):
        for t in range(8):
            a(f's_add_u32 {sr(st2)}, {sr(st1)}, {kb*8192 + t*1024}')
            a(f'buffer_load_dwordx4 {vr(O+4*t,4)}, {vr(vL16)}, {sr(sWS,4)}, {sr(st2)} offen')
        a('s_waitcnt vmcnt(0)')
        for t in range(8):
            a(f'v_mfma_f32_32x32x16_bf16 {vr(S[0],16)}, {vr(O+4*t,4)}, {vr(Q+4*t,4)}, {"0" if t==0 else vr(S[0],16)}')
        a('s_nop 7'); a('s_nop 7')
        for r in range(16):
            a(f'v_cmp_le_i32 vcc, {32*kb + 8*(r >> 2) + (r & 3)}, {vr(vDg)}')
            a('s_nop 1')
            a(f'v_cndmask_b32 {vr(S[0]+r)}, {vr(vNI)}, {vr(S[0]+r)}, vcc')
            a(f'v_max_f32 {vr(vM)}, {vr(vM)}, {vr(S[0]+r)}')
    a(f'v_subrev_u32 {vr(vDg)}, 64, {vr(vDg)}')
    a(f's_add_u32 {sr(st1)}, {sr(st1)}, 32768')
    a(f's_sub_u32 {sr(sCnt)}, {sr(sCnt)}, 1')
    a(f's_cmp_lg_u32 {sr(sCnt)}, 0')
    a('s_cbranch_scc1 fa_mx')
    a(f'v_mov_b32 {vr(vNI)}, {vr(vM)}')
    a('s_nop 1')
    a(f'v_permlane32_swap_b32 {vr(vM)}, {vr(vNI)}')
    a('s_nop 1')
    a(f'v_max_f32 {vr(vM)}, {vr(vM)}, {vr(vNI)}')
    for r in range(16): a(f'v_sub_f32 {vr(NEGM+r)}, 0, {vr(vM)}')
    a('s_branch fa_restart')
    a.label('fa_epi')
    a(f'v_add_u32 {vr(vt+4)}, {LDS_KZ}, {vr(vL16)}')
    a(f'ds_read_b128 {vr(64,4)}, {vr(vt+4)}')
    a(f'ds_read_b128 {vr(68,4)}, {vr(vt+4)} offset:1024')
    a('s_waitcnt lgkmcnt(0)')
    mfma(a, 80, 64, PH, 'zero'); mfma(a, 80, 68, PH+4)
    a(f's_cmp_lg_u32 {sr(sIsB)}, 0')
    a('s_cbranch_scc1 fa_afin')
    epi_store()
    a.label('fa_afin')
    a('s_nop 7'); a('s_nop 7')
    a(f'v_add_f32 {vr(88)}, 0x358637bd, {vr(88)}')
    a(f'v_rcp_f32 {vr(88)}, {vr(88)}')
    a(f's_mul_i32 {sr(st0)}, {sr(sRb)}, {288*1024}')
    a(f'v_mul_f32 {vr(88)}, {vr(vG)}, {vr(88)}')
    a(f's_lshl_b32 {sr(st1)}, {sr(sH)}, 10')
    for r in range(8): a(f'v_mul_f32 {vr(80+r)}, {vr(88)}, {vr(80+r)}')
    for q in range(4): a(f'v_cvt_pk_bf16_f32 {vr(80+q)}, {vr(80+2*q)}, {vr(80+2*q+1)}')
    a(f's_add_u32 {sr(st0)}, {sr(st0)}, {sr(st1)}')
    a(f's_add_u32 {sr(st0)}, {sr(st0)}, {WS_CTX + 256*1024}')
    a(f'buffer_store_dwordx4 {vr(80,4)}, {vr(vL16)}, {sr(sWS,4)}, {sr(st0)} offen')
    a('s_waitcnt vmcnt(0)')
    stamp(a,11)
    a('s_branch fa_done')
    a.label('fa_side')
    a(f's_bitcmp1_b32 {sr(sPh)}, 0')
    a('s_cbranch_scc0 fa_sact')
    a(f's_add_u32 {sr(sPh)}, {sr(sPh)}, 1'); a('s_branch fa_loop_b')
    a.label('fa_sact')
    a(f's_cmp_eq_u32 {sr(sPh)}, 2'); a('s_cbranch_scc1 fa_s1')
    a(f's_cmp_eq_u32 {sr(sPh)}, 4'); a('s_cbranch_scc1 fa_s2')
    a(f's_cmp_eq_u32 {sr(sPh)}, 6'); a('s_cbranch_scc1 fa_s3')
    a(f's_cmp_eq_u32 {sr(sPh)}, 8'); a('s_cbranch_scc1 fa_s4')
    a(f's_cmp_eq_u32 {sr(sPh)}, 10'); a('s_cbranch_scc1 fa_s5')
    def kvp_loads(r0):
        a(f's_lshl_b32 {sr(st0)}, {sr(sH)}, 15')
        a(f's_add_u32 {sr(st0)}, {sr(st0)}, {WS_KVP + r0*4096}')
        for rt in range(4):
            if rt: a(f's_add_u32 {sr(st0)}, {sr(st0)}, 4096')
            a(f'buffer_load_dwordx4 {vr(222+4*rt,4)}, {vr(221)}, {sr(sWS,4)}, {sr(st0)} offen sc1')
    a('s_waitcnt vmcnt(0)')
    a(f's_add_u32 {sr(sPh)}, {sr(sStep)}, 0'); a('s_branch fa_loop_b')
    LDS_WT = 133632; vWT, vWTr = 240, 241; sW = 32
    a.label('fa_s1')
    a(f's_cmp_lg_u32 {sr(sWave)}, 0')
    a('s_cbranch_scc1 fa_noat2')
    a(f's_lshl_b32 {sr(st0)}, {sr(sH)}, 3')
    a(f'v_mov_b32 {vr(222)}, {sr(st0)}')
    a(f'v_mov_b32 {vr(223)}, 1')
    a('s_mov_b64 s[64:65], exec')
    a('s_mov_b64 exec, 1')
    a(f'buffer_atomic_add {vr(223)}, {vr(222)}, s[4:7], 0 offen offset:4 sc1')
    a('s_mov_b64 exec, s[64:65]')
    a.label('fa_noat2')
    l = vr(vLane)
    a(f'v_lshrrev_b32 {vr(vWT)}, 2, {l}')
    a(f'v_lshlrev_b32 {vr(vWT)}, 10, {vr(vWT)}')
    a(f'v_and_b32 {vr(220)}, 3, {l}')
    a(f'v_lshl_add_u32 {vr(vWT)}, {vr(220)}, 4, {vr(vWT)}')
    a(f'v_bfe_u32 {vr(221)}, {l}, 2, 2')
    a(f'v_lshrrev_b32 {vr(222)}, 5, {l}')
    a(f'v_lshl_add_u32 {vr(221)}, {vr(222)}, 2, {vr(221)}')
    a(f'v_lshlrev_b32 {vr(221)}, 6, {vr(221)}')
    a(f'v_bfe_u32 {vr(222)}, {l}, 4, 1')
    a(f'v_lshl_add_u32 {vr(221)}, {vr(222)}, 5, {vr(221)}')
    a(f'v_lshl_add_u32 {vr(221)}, {vr(220)}, 3, {vr(221)}')
    a(f's_mul_i32 s99, {sr(sWl)}, 5120')
    a(f's_add_u32 s99, s99, {LDS_WT}')
    a(f'v_add_u32 {vr(vWTr)}, s99, {vr(221)}')
    a('s_lshr_b32 s64, s2, 4')
    a('s_and_b32 s65, s2, 15')
    a('s_mul_i32 s65, s65, 18')
    a(f's_add_u32 s65, s65, {sr(sWl)}')
    for it in range(5):
        for x in [f's_add_u32 s66, s65, {4*it}', 's_cmp_lt_u32 s66, 256',
               f's_cselect_b32 {sr(sW)}, s56, s58', f's_cselect_b32 {sr(sW+1)}, s57, s59', 's_cselect_b32 s67, 0, 256',
               f's_cselect_b32 {sr(sW+2)}, 8, 1', f's_lshl_b32 {sr(sW+2)}, {sr(sW+2)}, 19',
               f's_and_b32 {sr(sW+1)}, {sr(sW+1)}, 0xffff', f's_mov_b32 {sr(sW+3)}, 0x00020000',
               's_sub_u32 s67, s66, s67', 's_lshl_b32 s67, s67, 14', 's_lshl_b32 s68, s64, 6', 's_add_u32 s67, s67, s68',
               's_mul_i32 s68, s64, 288', 's_add_u32 s68, s68, s66', 's_lshl_b32 s68, s68, 10', f's_add_u32 {sr(92+it)}, s68, {WS_WT}']: a(x)
        if it == 4:
            a(f's_cmp_ge_u32 {sr(sWl)}, 2'); a('s_cselect_b32 s67, 0x40000000, s67'); a(f's_cselect_b32 {sr(92+it)}, 0x40000000, {sr(92+it)}')
        a(f's_add_u32 m0, s99, {it*1024}'); a('s_nop 0')
        a(f'buffer_load_dwordx4 {vr(vWT)}, {sr(sW,4)}, s67 offen lds')
    a(f's_add_u32 {sr(sPh)}, {sr(sStep)}, 2'); a('s_branch fa_loop_b')
    a.label('fa_s2')
    a('s_waitcnt vmcnt(0)')
    for it in range(5):
        a(f'ds_read_b64_tr_b16 {vr(220+4*it,2)}, {vr(vWTr)} offset:{it*1024}')
        a(f'ds_read_b64_tr_b16 {vr(222+4*it,2)}, {vr(vWTr)} offset:{it*1024+512}')
    a('s_waitcnt lgkmcnt(0)')
    for it in range(5):
        a(f'buffer_store_dwordx4 {vr(220+4*it,4)}, {vr(vL16)}, {sr(sWS,4)}, {sr(92+it)} offen')
    a(f's_lshl_b32 {sr(st0)}, {sr(sH)}, 3')
    a(f'v_mov_b32 {vr(221)}, {sr(st0)}')
    a(f'buffer_load_dword {vr(220)}, {vr(221)}, s[4:7], 0 offen offset:4 sc1')
    a(f's_add_u32 {sr(sPh)}, {sr(sStep)}, 4'); a('s_branch fa_loop_b')
    a.label('fa_s3')
    a(f's_mov_b32 {sr(st1)}, 40000')
    a.label('fa_s1_spin')
    a('s_waitcnt vmcnt(0)')
    a(f'v_readfirstlane_b32 {sr(st0)}, {vr(220)}')
    a(f's_cmp_ge_u32 {sr(st0)}, 8')
    a('s_cbranch_scc1 fa_s1_ok')
    a(f'buffer_load_dword {vr(220)}, {vr(221)}, s[4:7], 0 offen offset:4 sc1')
    a(f's_sub_u32 {sr(st1)}, {sr(st1)}, 1')
    a(f's_cmp_lg_u32 {sr(st1)}, 0')
    a('s_cbranch_scc1 fa_s1_spin')
    a('s_waitcnt vmcnt(0)')
    a.label('fa_s1_ok')
    a(f'v_lshlrev_b32 {vr(221)}, 4, {vr(vTid)}')
    kvp_loads(0)
    a(f's_add_u32 {sr(sPh)}, {sr(sStep)}, 6'); a('s_branch fa_loop_b')
    a.label('fa_s4')
    a('s_waitcnt vmcnt(0)')
    for e in range(4):
        a(f'v_add_f32 {vr(238+e)}, {vr(222+e)}, {vr(226+e)}')
        a(f'v_add_f32 {vr(230+e)}, {vr(230+e)}, {vr(234+e)}')
    for e in range(4): a(f'v_add_f32 {vr(238+e)}, {vr(238+e)}, {vr(230+e)}')
    kvp_loads(4)
    a(f's_add_u32 {sr(sPh)}, {sr(sStep)}, 8'); a('s_branch fa_loop_b')
    a.label('fa_s5')
    a('s_waitcnt vmcnt(0)')
    for e in range(4):
        a(f'v_add_f32 {vr(222+e)}, {vr(222+e)}, {vr(226+e)}')
        a(f'v_add_f32 {vr(230+e)}, {vr(230+e)}, {vr(234+e)}')
    for e in range(4): a(f'v_add_f32 {vr(238+e)}, {vr(238+e)}, {vr(222+e)}')
    for e in range(4): a(f'v_add_f32 {vr(238+e)}, {vr(238+e)}, {vr(230+e)}')
    a(f'v_cvt_pk_bf16_f32 {vr(238)}, {vr(238)}, {vr(239)}')
    a(f'v_cvt_pk_bf16_f32 {vr(239)}, {vr(240)}, {vr(241)}')
    a(f'v_bfe_u32 {vr(222)}, {vr(vTid)}, 1, 1')
    a(f'v_lshlrev_b32 {vr(222)}, 10, {vr(222)}')
    a(f'v_lshrrev_b32 {vr(223)}, 2, {vr(vTid)}')
    a(f'v_lshl_add_u32 {vr(222)}, {vr(223)}, 4, {vr(222)}')
    a(f'v_and_b32 {vr(223)}, 1, {vr(vTid)}')
    a(f'v_lshl_add_u32 {vr(222)}, {vr(223)}, 3, {vr(222)}')
    a(f'v_add_u32 {vr(222)}, {LDS_KZ}, {vr(222)}')
    a(f'ds_write_b64 {vr(222)}, {vr(238,2)}')
    a('s_waitcnt lgkmcnt(0)')
    a(f's_add_u32 {sr(sPh)}, {sr(sStep)}, 10'); a('s_branch fa_loop_b')
    emit_ool()
    a.label('fa_done')
```
